```python
import torch

def _softmax(x, axis=-1):
    return torch.softmax(x, dim=axis)
def _gelu(x):
    return torch.nn.functional.gelu(x, approximate="tanh")
def _silu(x):
    return torch.nn.functional.silu(x)
def _sigmoid(x):
    return torch.sigmoid(x)
def _layernorm(x, axis=-1, eps=1e-5):
    m = x.mean(dim=axis, keepdim=True)
    v = x.var(dim=axis, keepdim=True, unbiased=False)
    return (x - m) / torch.sqrt(v + eps)
def _scatter_add(tgt, idx, src, axis=0):
    return tgt.clone().index_add_(axis, idx, src)
def _segment_sum(src, seg, n):
    out = torch.zeros((n,) + src.shape[1:], dtype=src.dtype)
    return out.index_add_(0, seg, src)
def _pad(x, pw):
    flat = tuple(v for pair in reversed(pw) for v in pair)
    return torch.nn.functional.pad(x, flat)

kernel_name = 'standalone__dense_activation_silu__prompt'

def setup_inputs():

    _w = (lambda a: (lambda t: t.to(torch.bfloat16) if t.is_floating_point() else t)(torch.as_tensor(a)))
    B, S, D, F = 1, 2048, 640, 1728
    return {
        "x": _w((lambda *s: torch.randn(*s, dtype=torch.bfloat16) * 0.1)(B, S, D)),
        "w1": _w((lambda *s: torch.randn(*s, dtype=torch.bfloat16) * 3.2)(D, F) * (D ** -0.5)),
        "w2": _w((lambda *s: torch.randn(*s, dtype=torch.bfloat16) * 3.2)(F, D) * (F ** -0.5)),
    }

def reference(x, w1, w2):
    h = torch.einsum("bsd,df->bsf", x, w1)
    h = _silu(h)
    out = torch.einsum("bsf,fd->bsd", h, w2)
    return out
```

```python
import sys

OUT = sys.argv[1] if len(sys.argv) > 1 else "standalone__dense_activation_silu__prompt.s"

M, D, F = 2048, 640, 1728
X_BYTES = M * D * 2
W1_BYTES = D * F * 2
W2_BYTES = F * D * 2
H_BYTES = M * F * 2
O_BYTES = M * D * 2


class Asm:
    def __init__(self):
        self.lines = []

    def __call__(self, s):
        self.lines.append("    " + s)

    def raw(self, s):
        self.lines.append(s)

    def label(self, s):
        self.lines.append(s + ":")

    def text(self):
        return "\n".join(self.lines) + "\n"


def vr(a, n):
    return f"v[{a}:{a + n - 1}]"


HEADER = """; Kernarg layout for this problem (48 bytes, ptrs only, base s[0:1]):
; @launch kernel=gemm1_kernel grid=({g1},1,1) block=(256,1,1) lds={l1}
; @launch kernel=gemm2_kernel grid=({g2},1,1) block=(256,1,1) lds={l2}
.amdgcn_target "amdgcn-amd-amdhsa--gfx950"
"""


def kd(name, vgpr, sgpr=64):
    acc = (vgpr + 3) // 4 * 4
    return f""".section .rodata,"a"
.p2align 6
.amdhsa_kernel {name}
  .amdhsa_next_free_vgpr {vgpr}
  .amdhsa_next_free_sgpr {sgpr}
  .amdhsa_accum_offset {acc}
  .amdhsa_group_segment_fixed_size 0
  .amdhsa_kernarg_size 48
  .amdhsa_user_sgpr_count 2
  .amdhsa_user_sgpr_kernarg_segment_ptr 1
  .amdhsa_system_sgpr_workgroup_id_x 1
.end_amdhsa_kernel
"""


def srd(a, sd, sp, nbytes):
    a(f"s_mov_b32 s{sd}, s{sp}")
    a(f"s_and_b32 s{sd + 1}, s{sp + 1}, 0xffff")
    a(f"s_mov_b32 s{sd + 2}, {nbytes}")
    a(f"s_mov_b32 s{sd + 3}, 0x00020000")


G1_WGS = 16 * 14
G1_LDS = 4 * 32768


def gen_gemm1(a):
    KS = D // 64
    a.raw(".text")
    a.raw(".globl gemm1_kernel")
    a.raw(".p2align 8")
    a.raw(".type gemm1_kernel,@function")
    a.label("gemm1_kernel")
    a(f"s_cmp_ge_u32 s2, {G1_WGS}")
    a("s_cbranch_scc1 G1_END")
    a("s_load_dwordx4 s[28:31], s[0:1], 0")
    a("s_load_dwordx2 s[32:33], s[0:1], 40")
    a("s_and_b32 s24, s2, 7")
    a("s_lshr_b32 s25, s2, 3")
    a("s_and_b32 s26, s24, 3")
    a("s_lshl_b32 s26, s26, 2")
    a("s_and_b32 s27, s25, 3")
    a("s_add_u32 s26, s26, s27")
    a("s_lshr_b32 s24, s24, 2")
    a("s_mul_i32 s24, s24, 7")
    a("s_lshr_b32 s25, s25, 2")
    a("s_add_u32 s24, s24, s25")
    a("s_lshl_b32 s22, s26, 7")
    a("s_lshl_b32 s23, s24, 7")
    a("v_lshrrev_b32 v1, 6, v0")
    a("v_and_b32 v17, 63, v0")
    a("v_readfirstlane_b32 s21, v1")
    a("v_mov_b32 v1, v17")
    a("v_lshrrev_b32 v18, 3, v1")
    a("v_mul_u32_u24 v18, 0x500, v18")
    a("v_and_b32 v19, 7, v1")
    a("v_lshrrev_b32 v20, 4, v1")
    a("v_xor_b32 v21, v19, v20")
    a("v_lshlrev_b32 v21, 4, v21")
    a("v_add_u32 v2, v18, v21")
    a("v_xor_b32 v21, 4, v21" if False else "v_xor_b32 v21, v19, v20")
    a("v_xor_b32 v21, 4, v21")
    a("v_lshlrev_b32 v21, 4, v21")
    a("v_add_u32 v3, v18, v21")
    a("v_mul_u32_u24 v18, 0xd80, v20")
    a("v_and_b32 v19, 15, v1")
    a("v_lshlrev_b32 v21, 2, v20")
    a("v_xor_b32 v19, v19, v21")
    a("v_lshlrev_b32 v19, 4, v19")
    a("v_add_u32 v4, v18, v19")
    a("s_and_b32 s34, s21, 1")
    a("s_lshr_b32 s35, s21, 1")
    a("s_lshl_b32 s24, s21, 5")
    a("s_add_u32 s24, s24, s22")
    a("s_mul_i32 s17, s24, 1280")
    a("s_mul_i32 s18, s21, %d" % (16 * 3456))
    a("s_lshl_b32 s24, s23, 1")
    a("s_add_u32 s18, s18, s24")
    a("s_lshl_b32 s19, s21, 12")
    a("s_add_u32 s20, s19, 16384")
    a("v_and_b32 v18, 31, v1")
    a("s_lshl_b32 s24, s34, 6")
    a("v_add_u32 v18, s24, v18")
    a("v_lshrrev_b32 v19, 1, v18")
    a("v_and_b32 v19, 7, v19")
    a("v_lshrrev_b32 v20, 5, v1")
    a("v_xor_b32 v19, v19, v20")
    a("v_lshlrev_b32 v18, 7, v18")
    for kk in range(4):
        a(f"v_xor_b32 v20, {2 * kk}, v19")
        a("v_lshlrev_b32 v20, 4, v20")
        a(f"v_add_u32 v{5 + kk}, v18, v20")
        a(f"v_add_u32 v{9 + kk}, 0x10000, v{5 + kk}")
    a("v_lshrrev_b32 v18, 5, v1")
    a("v_lshlrev_b32 v18, 3, v18")
    a("v_and_b32 v19, 15, v1")
    a("v_lshrrev_b32 v19, 2, v19")
    a("v_add_u32 v18, v18, v19")
    a("v_lshlrev_b32 v18, 8, v18")
    a("v_and_b32 v20, 1, v1")
    a("v_lshlrev_b32 v20, 3, v20")
    a("v_add_u32 v18, v18, v20")
    a("v_add_u32 v18, 0x4000, v18")
    a("v_lshrrev_b32 v20, 4, v1")
    a("v_and_b32 v20, 1, v20")
    a("v_lshlrev_b32 v20, 1, v20")
    a("v_and_b32 v21, 3, v1")
    a("v_lshrrev_b32 v21, 1, v21")
    a("v_add_u32 v20, v20, v21")
    a("s_lshl_b32 s24, s35, 3")
    a("v_add_u32 v20, s24, v20")
    a("v_lshlrev_b32 v19, 2, v19")
    for sn in range(2):
        a(f"v_add_u32 v21, {4 * sn}, v20")
        a("v_xor_b32 v21, v21, v19")
        a("v_lshlrev_b32 v21, 4, v21")
        a(f"v_add_u32 v{13 + sn}, v18, v21")
        a(f"v_add_u32 v{15 + sn}, 0x10000, v{13 + sn}")
    a("s_waitcnt lgkmcnt(0)")
    srd(a, 4, 28, X_BYTES)
    srd(a, 8, 30, W1_BYTES)
    srd(a, 12, 32, H_BYTES)
    a("s_nop 4")

    def issue(stage):
        buf = stage % 4
        for jj in range(4):
            a(f"s_add_u32 m0, s19, {buf * 32768 + jj * 1024}")
            a(f"s_add_u32 s16, s17, {8 * jj * 1280 + stage * 128}")
            a(f"buffer_load_dwordx4 v{2 + (jj & 1)}, s[4:7], s16 offen lds")
        for jj in range(4):
            a(f"s_add_u32 m0, s20, {buf * 32768 + jj * 1024}")
            a(f"s_add_u32 s16, s18, {(stage * 64 + 4 * jj) * 3456}")
            a("buffer_load_dwordx4 v4, s[8:11], s16 offen lds")

    AF = [32, 40]
    BF = [48, 56]
    ACC = 64

    def reads(stage, kk, st):
        buf = stage % 4
        hi = buf >= 2
        boff = (buf & 1) * 32768
        for sn in range(2):
            ar = (15 if hi else 13) + sn
            for second in range(2):
                a(f"ds_read_b64_tr_b16 {vr(AF[st] + sn * 4 + second * 2, 2)}, v{ar} offset:{boff + kk * 4096 + second * 1024}")
        for sm in range(2):
            br = (9 if hi else 5) + kk
            a(f"ds_read_b128 {vr(BF[st] + sm * 4, 4)}, v{br} offset:{boff + sm * 4096}")

    for s in range(3):
        issue(s)
    for i in range(KS):
        n_out = 8 * (min(i + 2, KS - 1) - i)
        a(f"s_waitcnt vmcnt({n_out})")
        a("s_barrier")
        reads(i, 0, 0)
        if i + 3 < KS:
            issue(i + 3)
        for kk in range(4):
            st = kk & 1
            if kk < 3:
                reads(i, kk + 1, st ^ 1)
                a("s_waitcnt lgkmcnt(6)")
            else:
                a("s_waitcnt lgkmcnt(0)")
            for sn in range(2):
                for sm in range(2):
                    c = ACC + (sn * 2 + sm) * 16
                    src = "0" if (i == 0 and kk == 0) else vr(c, 16)
                    a(f"v_mfma_f32_32x32x16_bf16 {vr(c, 16)}, {vr(AF[st] + sn * 4, 4)}, {vr(BF[st] + sm * 4, 4)}, {src}")
    a("s_lshl_b32 s24, s35, 6")
    a("s_add_u32 s24, s24, s23")
    a(f"s_cmp_ge_u32 s24, {F}")
    a("s_cbranch_scc1 G1_END")
    a("v_and_b32 v18, 31, v1")
    a("s_lshl_b32 s24, s34, 6")
    a("v_add_u32 v18, s24, v18")
    a("v_mul_u32_u24 v18, 0xd80, v18")
    a("v_lshrrev_b32 v19, 5, v1")
    a("v_lshlrev_b32 v19, 3, v19")
    a("s_lshl_b32 s24, s35, 7")
    a("v_add_u32 v19, s24, v19")
    a("v_add_u32 v2, v18, v19")
    a(f"v_add_u32 v3, {32 * 3456}, v2")
    a("s_mul_i32 s16, s22, 3456")
    a("s_lshl_b32 s24, s23, 1")
    a("s_add_u32 s16, s16, s24")
    a("s_mov_b32 s36, 0xbfb8aa3b")
    a("s_mov_b32 s37, 0xbfb8aa3b")
    a("s_mov_b32 s38, 0xffff0000")
    a("s_nop 15")
    T = 16
    for sn in range(2):
        for sm in range(2):
            c = ACC + (sn * 2 + sm) * 16
            for qq in range(2):
                X = 32
                E = 40
                P = 48
                for j in range(4):
                    a(f"v_cvt_pk_bf16_f32 v{P + j}, v{c + qq * 8 + 2 * j}, v{c + qq * 8 + 2 * j + 1}")
                for j in range(4):
                    a(f"v_lshlrev_b32 v{X + 2 * j}, 16, v{P + j}")
                    a(f"v_and_b32 v{X + 2 * j + 1}, s38, v{P + j}")
                for j in range(4):
                    a(f"v_pk_mul_f32 {vr(E + 2 * j, 2)}, {vr(X + 2 * j, 2)}, s[36:37]")
                for j in range(8):
                    a(f"v_exp_f32 v{E + j}, v{E + j}")
                for j in range(4):
                    a(f"v_pk_add_f32 {vr(E + 2 * j, 2)}, {vr(E + 2 * j, 2)}, 1.0 op_sel_hi:[1,0]")
                for j in range(8):
                    a(f"v_rcp_f32 v{E + j}, v{E + j}")
                for j in range(4):
                    a(f"v_pk_mul_f32 {vr(X + 2 * j, 2)}, {vr(X + 2 * j, 2)}, {vr(E + 2 * j, 2)}")
                O = 52 + (qq * 4)
                for j in range(4):
                    a(f"v_cvt_pk_bf16_f32 v{O + j}, v{X + 2 * j}, v{X + 2 * j + 1}")
                for j in range(2):
                    q = qq * 2 + j
                    a(f"buffer_store_dwordx2 {vr(O + 2 * j, 2)}, v{2 + sm}, s[12:15], s16 offen offset:{(sn * 32 + 8 * q) * 2}")
    a.label("G1_END")
    a("s_endpgm")
    a.raw(kd("gemm1_kernel", 128))


G2_WGS = 256
G2_LDS = 4 * 3 * 10240


def gen_gemm2(a):
    a.raw(".text")
    a.raw(".globl gemm2_kernel")
    a.raw(".p2align 8")
    a.raw(".type gemm2_kernel,@function")
    a.label("gemm2_kernel")
    a(f"s_cmp_ge_u32 s2, {G2_WGS}")
    a("s_cbranch_scc1 G2_END")
    a("s_load_dwordx4 s[28:31], s[0:1], 16")
    a("s_load_dwordx2 s[32:33], s[0:1], 40")
    a("s_and_b32 s24, s2, 7")
    a("s_lshr_b32 s25, s2, 3")
    a("s_and_b32 s26, s24, 3")
    a("s_lshl_b32 s26, s26, 3")
    a("s_and_b32 s27, s25, 7")
    a("s_add_u32 s26, s26, s27")
    a("s_lshr_b32 s24, s24, 2")
    a("s_lshl_b32 s24, s24, 2")
    a("s_lshr_b32 s25, s25, 3")
    a("s_add_u32 s24, s24, s25")
    a("s_lshl_b32 s20, s26, 6")
    a("s_mul_i32 s21, s24, 80")
    a("v_lshrrev_b32 v1, 6, v0")
    a("v_and_b32 v12, 63, v0")
    a("v_readfirstlane_b32 s19, v1")
    a("v_mov_b32 v1, v12")
    for j in range(5):
        a(f"v_add_u32 v12, {64 * j}, v1")
        a("v_mul_u32_u24 v13, 205, v12")
        a("v_lshrrev_b32 v13, 11, v13")
        a("v_mul_u32_u24 v14, 10, v13")
        a("v_sub_u32 v14, v12, v14")
        a("v_and_b32 v15, 0x33, v13")
        a("v_and_b32 v12, 4, v13")
        a("v_lshlrev_b32 v12, 1, v12")
        a("v_or_b32 v15, v15, v12")
        a("v_and_b32 v12, 8, v13")
        a("v_lshrrev_b32 v12, 1, v12")
        a("v_or_b32 v15, v15, v12")
        a("v_mul_u32_u24 v15, 0x500, v15")
        a("v_lshlrev_b32 v14, 4, v14")
        a(f"v_add_u32 v{2 + j}, v15, v14")
    a("v_and_b32 v12, 15, v1")
    a("v_add_u32 v12, s20, v12")
    a("v_mul_u32_u24 v12, 0xd80, v12")
    a("v_lshrrev_b32 v13, 4, v1")
    a("v_lshlrev_b32 v13, 4, v13")
    a("v_add_u32 v7, v12, v13")
    for f in range(1, 4):
        a(f"v_add_u32 v{7 + f}, {16 * 3456 * f}, v7")
    a("v_lshrrev_b32 v12, 5, v1")
    a("v_lshlrev_b32 v12, 4, v12")
    a("v_lshrrev_b32 v13, 4, v1")
    a("v_and_b32 v13, 1, v13")
    a("v_lshlrev_b32 v13, 2, v13")
    a("v_add_u32 v12, v12, v13")
    a("v_and_b32 v13, 15, v1")
    a("v_lshrrev_b32 v13, 2, v13")
    a("v_add_u32 v12, v12, v13")
    a("v_mul_u32_u24 v12, 160, v12")
    a("v_and_b32 v13, 3, v1")
    a("v_lshlrev_b32 v13, 3, v13")
    a("v_add_u32 v12, v12, v13")
    a("s_mul_i32 s18, s19, 30720")
    a("v_add_u32 v11, s18, v12")
    a("s_mul_i32 s17, s19, 81920")
    a("s_lshl_b32 s24, s21, 1")
    a("s_add_u32 s17, s17, s24")
    a("s_lshl_b32 s23, s19, 7")
    a("s_waitcnt lgkmcnt(0)")
    srd(a, 4, 32, H_BYTES)
    srd(a, 8, 28, W2_BYTES)
    srd(a, 12, 30, O_BYTES)
    a("s_nop 4")

    AFR = [16, 36]
    HB = 56
    ACC = 152

    def issue(t):
        b = t % 3
        for j in range(10):
            a(f"s_add_u32 m0, s18, {b * 10240 + j * 1024}")
            a(f"s_add_u32 s16, s17, {t * 327680 + (40960 if j >= 5 else 0)}")
            a(f"buffer_load_dwordx4 v{2 + j % 5}, s[8:11], s16 offen lds")
        a(f"s_add_u32 s16, s23, {t * 512}")
        for f in range(4):
            for kk in range(2):
                a(f"buffer_load_dwordx4 {vr(HB + b * 32 + (f * 2 + kk) * 4, 4)}, v{7 + f}, s[4:7], s16 offen offset:{kk * 64}")

    def compute(t):
        b = t % 3
        for kk in range(2):
            for ns in range(5):
                for second in range(2):
                    a(f"ds_read_b64_tr_b16 {vr(AFR[kk] + ns * 4 + second * 2, 2)}, v11 offset:{b * 10240 + kk * 32 * 160 + second * 8 * 160 + ns * 32}")
        for kk in range(2):
            a(f"s_waitcnt lgkmcnt({10 if kk == 0 else 0})")
            for f in range(4):
                for ns in range(5):
                    c = ACC + (f * 5 + ns) * 4
                    src = "0" if (t == 0 and kk == 0) else vr(c, 4)
                    a(f"v_mfma_f32_16x16x32_bf16 {vr(c, 4)}, {vr(AFR[kk] + ns * 4, 4)}, {vr(HB + b * 32 + (f * 2 + kk) * 4, 4)}, {src}")

    issue(0)
    issue(1)
    for t in range(4):
        issue(t + 2)
        a("s_waitcnt vmcnt(36)")
        compute(t)
    a("s_cmp_eq_u32 s19, 3")
    a("s_cbranch_scc1 G2_SHORT")
    issue(6)
    a("s_waitcnt vmcnt(36)")
    compute(4)
    a("s_waitcnt vmcnt(18)")
    compute(5)
    a("s_waitcnt vmcnt(0)")
    compute(6)
    a("s_branch G2_RED")
    a.label("G2_SHORT")
    a("s_waitcnt vmcnt(18)")
    compute(4)
    a("s_waitcnt vmcnt(0)")
    compute(5)
    a.label("G2_RED")
    a("v_lshlrev_b32 v12, 4, v1")
    a("s_mul_i32 s24, s19, 20480")
    a("v_add_u32 v13, s24, v12")
    a("s_mul_i32 s24, s19, 5120")
    a("v_add_u32 v14, s24, v12")
    a("v_add_u32 v15, 40960, v14")
    a("s_nop 7")
    a("s_barrier")
    for f in range(4):
        for ns in range(5):
            a(f"ds_write_b128 v13, {vr(ACC + (f * 5 + ns) * 4, 4)} offset:{(f * 5 + ns) * 1024}")
    a("s_waitcnt lgkmcnt(0)")
    a("s_barrier")
    R = 16
    for src in range(4):
        for ns in range(5):
            a(f"ds_read_b128 {vr(R + (src * 5 + ns) * 4, 4)}, v{14 + (src >> 1)} offset:{(src & 1) * 20480 + ns * 1024}")
    a("v_and_b32 v12, 15, v1")
    a("s_lshl_b32 s24, s19, 4")
    a("s_add_u32 s24, s24, s20")
    a("v_add_u32 v12, s24, v12")
    a("v_mul_u32_u24 v12, 0x500, v12")
    a("v_lshrrev_b32 v13, 4, v1")
    a("v_lshlrev_b32 v13, 3, v13")
    a("s_lshl_b32 s24, s21, 1")
    a("v_add_u32 v13, s24, v13")
    a("v_add_u32 v12, v12, v13")
    a("s_waitcnt lgkmcnt(0)")
    for ns in range(5):
        for r in range(2):
            d0 = R + ns * 4 + r * 2
            for src in range(1, 4):
                a(f"v_pk_add_f32 {vr(d0, 2)}, {vr(d0, 2)}, {vr(R + (src * 5 + ns) * 4 + r * 2, 2)}")
    for ns in range(5):
        d0 = R + ns * 4
        a(f"v_cvt_pk_bf16_f32 v{100 + ns * 2}, v{d0}, v{d0 + 1}")
        a(f"v_cvt_pk_bf16_f32 v{101 + ns * 2}, v{d0 + 2}, v{d0 + 3}")
    for ns in range(5):
        a(f"buffer_store_dwordx2 {vr(100 + ns * 2, 2)}, v12, s[12:15], 0 offen offset:{ns * 32}")
    a.label("G2_END")
    a("s_endpgm")
    a.raw(kd("gemm2_kernel", 232))


def main():
    for c in range(320):
        assert (c * 205) >> 11 == c // 10
    a = Asm()
    a.raw(HEADER.format(g1=G1_WGS, l1=G1_LDS, g2=G2_WGS, l2=G2_LDS).rstrip("\n"))
    gen_gemm1(a)
    gen_gemm2(a)
    open(OUT, "w").write(a.text())
    print("wrote", OUT, len(a.lines), "lines")


main()
```

```python
import sys

OUT = sys.argv[1] if len(sys.argv) > 1 else "standalone__dense_activation_silu__prompt.s"

M, D, F = 2048, 640, 1728
X_BYTES = M * D * 2
W1_BYTES = D * F * 2
W2_BYTES = F * D * 2
H_BYTES = M * F * 2
O_BYTES = M * D * 2


class Asm:
    def __init__(self):
        self.lines = []

    def __call__(self, s):
        self.lines.append("    " + s)

    def raw(self, s):
        self.lines.append(s)

    def label(self, s):
        self.lines.append(s + ":")

    def text(self):
        return "\n".join(self.lines) + "\n"

    def reset_track(self):
        self.vq = []
        self.lq = []

    def vm(self, s, tag):
        self(s)
        self.vq.append(tag)

    def ds(self, s, tag):
        self(s)
        self.lq.append(tag)

    def _n_after(self, q, tag):
        idx = [i for i, t in enumerate(q) if t == tag]
        if not idx:
            return None
        return len(q) - 1 - idx[-1]

    def wait(self, vtag=None, ltag=None):
        parts = []
        if vtag is not None:
            n = self._n_after(self.vq, vtag)
            if n is not None:
                assert n <= 63
                parts.append(f"vmcnt({n})")
                self.vq = self.vq[len(self.vq) - n:] if n else []
        if ltag is not None:
            n = self._n_after(self.lq, ltag)
            if n is not None:
                assert n <= 15, n
                parts.append(f"lgkmcnt({n})")
                self.lq = self.lq[len(self.lq) - n:] if n else []
        if parts:
            self("s_waitcnt " + " ".join(parts))


def interleave(a, mfmas, fillers):
    n = len(mfmas)
    k = len(fillers)
    j = 0
    for i, m in enumerate(mfmas):
        a(m)
        tgt = (i + 1) * k // n
        while j < tgt:
            fillers[j]()
            j += 1


def vr(a, n):
    return f"v[{a}:{a + n - 1}]"


HEADER = """; Kernarg layout for this problem (48 bytes, ptrs only, base s[0:1]):
; @launch kernel=gemm1_kernel grid=({g1},1,1) block=(256,1,1) lds={l1}
; @launch kernel=gemm2_kernel grid=({g2},1,1) block=(256,1,1) lds={l2}
.amdgcn_target "amdgcn-amd-amdhsa--gfx950"
"""


def kd(name, vgpr, sgpr=64):
    acc = (vgpr + 3) // 4 * 4
    return f""".section .rodata,"a"
.p2align 6
.amdhsa_kernel {name}
  .amdhsa_next_free_vgpr {vgpr}
  .amdhsa_next_free_sgpr {sgpr}
  .amdhsa_accum_offset {acc}
  .amdhsa_group_segment_fixed_size 0
  .amdhsa_kernarg_size 48
  .amdhsa_user_sgpr_count 2
  .amdhsa_user_sgpr_kernarg_segment_ptr 1
  .amdhsa_system_sgpr_workgroup_id_x 1
.end_amdhsa_kernel
"""


def srd(a, sd, sp, nbytes):
    a(f"s_mov_b32 s{sd}, s{sp}")
    a(f"s_and_b32 s{sd + 1}, s{sp + 1}, 0xffff")
    a(f"s_mov_b32 s{sd + 2}, {nbytes}")
    a(f"s_mov_b32 s{sd + 3}, 0x00020000")


G1_WGS = 16 * 14
G1_LDS = 4 * 32768


def gen_gemm1(a):
    KS = D // 64
    a.raw(".text")
    a.raw(".globl gemm1_kernel")
    a.raw(".p2align 8")
    a.raw(".type gemm1_kernel,@function")
    a.label("gemm1_kernel")
    a(f"s_cmp_ge_u32 s2, {G1_WGS}")
    a("s_cbranch_scc1 G1_END")
    a("s_load_dwordx4 s[28:31], s[0:1], 0")
    a("s_load_dwordx2 s[32:33], s[0:1], 40")
    a("s_and_b32 s24, s2, 7")
    a("s_lshr_b32 s25, s2, 3")
    a("s_and_b32 s26, s24, 3")
    a("s_lshl_b32 s26, s26, 2")
    a("s_and_b32 s27, s25, 3")
    a("s_add_u32 s26, s26, s27")
    a("s_lshr_b32 s24, s24, 2")
    a("s_mul_i32 s24, s24, 7")
    a("s_lshr_b32 s25, s25, 2")
    a("s_add_u32 s24, s24, s25")
    a("s_lshl_b32 s22, s26, 7")
    a("s_lshl_b32 s23, s24, 7")
    a("v_lshrrev_b32 v1, 6, v0")
    a("v_and_b32 v17, 63, v0")
    a("v_readfirstlane_b32 s21, v1")
    a("v_mov_b32 v1, v17")
    a("v_lshrrev_b32 v18, 3, v1")
    a("v_mul_u32_u24 v18, 0x500, v18")
    a("v_and_b32 v19, 7, v1")
    a("v_lshrrev_b32 v20, 4, v1")
    a("v_xor_b32 v21, v19, v20")
    a("v_lshlrev_b32 v21, 4, v21")
    a("v_add_u32 v2, v18, v21")
    a("v_xor_b32 v21, 4, v21" if False else "v_xor_b32 v21, v19, v20")
    a("v_xor_b32 v21, 4, v21")
    a("v_lshlrev_b32 v21, 4, v21")
    a("v_add_u32 v3, v18, v21")
    a("v_mul_u32_u24 v18, 0xd80, v20")
    a("v_and_b32 v19, 15, v1")
    a("v_lshlrev_b32 v21, 2, v20")
    a("v_xor_b32 v19, v19, v21")
    a("v_lshlrev_b32 v19, 4, v19")
    a("v_add_u32 v4, v18, v19")
    a("s_and_b32 s34, s21, 1")
    a("s_lshr_b32 s35, s21, 1")
    a("s_lshl_b32 s24, s21, 5")
    a("s_add_u32 s24, s24, s22")
    a("s_mul_i32 s17, s24, 1280")
    a("s_mul_i32 s18, s21, %d" % (16 * 3456))
    a("s_lshl_b32 s24, s23, 1")
    a("s_add_u32 s18, s18, s24")
    a("s_lshl_b32 s19, s21, 12")
    a("s_add_u32 s20, s19, 16384")
    a("v_and_b32 v18, 31, v1")
    a("s_lshl_b32 s24, s34, 6")
    a("v_add_u32 v18, s24, v18")
    a("v_lshrrev_b32 v19, 1, v18")
    a("v_and_b32 v19, 7, v19")
    a("v_lshrrev_b32 v20, 5, v1")
    a("v_xor_b32 v19, v19, v20")
    a("v_lshlrev_b32 v18, 7, v18")
    for kk in range(4):
        a(f"v_xor_b32 v20, {2 * kk}, v19")
        a("v_lshlrev_b32 v20, 4, v20")
        a(f"v_add_u32 v{5 + kk}, v18, v20")
        a(f"v_add_u32 v{9 + kk}, 0x10000, v{5 + kk}")
    a("v_lshrrev_b32 v18, 5, v1")
    a("v_lshlrev_b32 v18, 3, v18")
    a("v_and_b32 v19, 15, v1")
    a("v_lshrrev_b32 v19, 2, v19")
    a("v_add_u32 v18, v18, v19")
    a("v_lshlrev_b32 v18, 8, v18")
    a("v_and_b32 v20, 1, v1")
    a("v_lshlrev_b32 v20, 3, v20")
    a("v_add_u32 v18, v18, v20")
    a("v_add_u32 v18, 0x4000, v18")
    a("v_lshrrev_b32 v20, 4, v1")
    a("v_and_b32 v20, 1, v20")
    a("v_lshlrev_b32 v20, 1, v20")
    a("v_and_b32 v21, 3, v1")
    a("v_lshrrev_b32 v21, 1, v21")
    a("v_add_u32 v20, v20, v21")
    a("s_lshl_b32 s24, s35, 3")
    a("v_add_u32 v20, s24, v20")
    a("v_lshlrev_b32 v19, 2, v19")
    for sn in range(2):
        a(f"v_add_u32 v21, {4 * sn}, v20")
        a("v_xor_b32 v21, v21, v19")
        a("v_lshlrev_b32 v21, 4, v21")
        a(f"v_add_u32 v{13 + sn}, v18, v21")
        a(f"v_add_u32 v{15 + sn}, 0x10000, v{13 + sn}")
    a("s_waitcnt lgkmcnt(0)")
    srd(a, 4, 28, X_BYTES)
    srd(a, 8, 30, W1_BYTES)
    srd(a, 12, 32, H_BYTES)
    a("s_nop 4")

    a.reset_track()

    def dma(stage, j):
        buf = stage % 4
        jj = j & 3

        def f():
            if j < 4:
                a(f"s_add_u32 m0, s19, {buf * 32768 + jj * 1024}")
                a(f"s_add_u32 s16, s17, {8 * jj * 1280 + stage * 128}")
                a.vm(f"buffer_load_dwordx4 v{2 + (jj & 1)}, s[4:7], s16 offen lds", ("st", stage))
            else:
                a(f"s_add_u32 m0, s20, {buf * 32768 + jj * 1024}")
                a(f"s_add_u32 s16, s18, {(stage * 64 + 4 * jj) * 3456}")
                a.vm("buffer_load_dwordx4 v4, s[8:11], s16 offen lds", ("st", stage))
        return f

    AF = [32, 40]
    BF = [48, 56]
    ACC = 64

    def read_ops(stage, kk, st):
        buf = stage % 4
        hi = buf >= 2
        boff = (buf & 1) * 32768
        ops = []
        tag = ("fr", stage, kk)
        for sm in range(2):
            br = (9 if hi else 5) + kk
            ops.append(lambda br=br, sm=sm: a.ds(f"ds_read_b128 {vr(BF[st] + sm * 4, 4)}, v{br} offset:{boff + sm * 4096}", tag))
            sn = sm
            ar = (15 if hi else 13) + sn
            for second in range(2):
                ops.append(lambda ar=ar, sn=sn, second=second: a.ds(
                    f"ds_read_b64_tr_b16 {vr(AF[st] + sn * 4 + second * 2, 2)}, v{ar} offset:{boff + kk * 4096 + second * 1024}", tag))
        return ops

    def dma_for(i, kk):
        if kk == 3:
            s_, p = i + 4, 0
        else:
            s_, p = i + 3, kk + 1
        if s_ >= KS:
            return []
        return [dma(s_, p), dma(s_, 4 + p)]

    for s_ in range(3):
        for j in (0, 4, 1, 5, 2, 6, 3, 7):
            dma(s_, j)()
    for f in dma_for(-1, 3):
        f()
    a.wait(vtag=("st", 0))
    a("s_barrier")
    for f in read_ops(0, 0, 0):
        f()
    for i in range(KS):
        for kk in range(4):
            st = kk & 1
            a.wait(ltag=("fr", i, kk))
            if kk == 3 and i + 1 < KS:
                a.wait(vtag=("st", i + 1))
                a("s_barrier")
            mf = []
            for sn in range(2):
                for sm in range(2):
                    c = ACC + (sn * 2 + sm) * 16
                    src = "0" if (i == 0 and kk == 0) else vr(c, 16)
                    mf.append(f"v_mfma_f32_32x32x16_bf16 {vr(c, 16)}, {vr(AF[st] + sn * 4, 4)}, {vr(BF[st] + sm * 4, 4)}, {src}")
            if kk < 3:
                rd = read_ops(i, kk + 1, st ^ 1)
            elif i + 1 < KS:
                rd = read_ops(i + 1, 0, st ^ 1)
            else:
                rd = []
            dm = dma_for(i, kk)
            fill = []
            if rd:
                fill = [rd[0], rd[1], rd[2]] + dm[:1] + [rd[3], rd[4], rd[5]] + dm[1:]
            else:
                fill = dm
            interleave(a, mf, fill)
    a("s_lshl_b32 s24, s35, 6")
    a("s_add_u32 s24, s24, s23")
    a(f"s_cmp_ge_u32 s24, {F}")
    a("s_cbranch_scc1 G1_END")
    a("v_and_b32 v18, 31, v1")
    a("s_lshl_b32 s24, s34, 6")
    a("v_add_u32 v18, s24, v18")
    a("v_mul_u32_u24 v18, 0xd80, v18")
    a("v_lshrrev_b32 v19, 5, v1")
    a("v_lshlrev_b32 v19, 3, v19")
    a("s_lshl_b32 s24, s35, 7")
    a("v_add_u32 v19, s24, v19")
    a("v_add_u32 v2, v18, v19")
    a(f"v_add_u32 v3, {32 * 3456}, v2")
    a("s_mul_i32 s16, s22, 3456")
    a("s_lshl_b32 s24, s23, 1")
    a("s_add_u32 s16, s16, s24")
    a("s_mov_b32 s36, 0xbfb8aa3b")
    a("s_mov_b32 s37, 0xbfb8aa3b")
    a("s_mov_b32 s38, 0xffff0000")
    a("s_nop 15")
    T = 16
    for sn in range(2):
        for sm in range(2):
            c = ACC + (sn * 2 + sm) * 16
            for qq in range(2):
                X = 32
                E = 40
                P = 48
                for j in range(4):
                    a(f"v_cvt_pk_bf16_f32 v{P + j}, v{c + qq * 8 + 2 * j}, v{c + qq * 8 + 2 * j + 1}")
                for j in range(4):
                    a(f"v_lshlrev_b32 v{X + 2 * j}, 16, v{P + j}")
                    a(f"v_and_b32 v{X + 2 * j + 1}, s38, v{P + j}")
                for j in range(4):
                    a(f"v_pk_mul_f32 {vr(E + 2 * j, 2)}, {vr(X + 2 * j, 2)}, s[36:37]")
                for j in range(8):
                    a(f"v_exp_f32 v{E + j}, v{E + j}")
                for j in range(4):
                    a(f"v_pk_add_f32 {vr(E + 2 * j, 2)}, {vr(E + 2 * j, 2)}, 1.0 op_sel_hi:[1,0]")
                for j in range(8):
                    a(f"v_rcp_f32 v{E + j}, v{E + j}")
                for j in range(4):
                    a(f"v_pk_mul_f32 {vr(X + 2 * j, 2)}, {vr(X + 2 * j, 2)}, {vr(E + 2 * j, 2)}")
                O = 52 + (qq * 4)
                for j in range(4):
                    a(f"v_cvt_pk_bf16_f32 v{O + j}, v{X + 2 * j}, v{X + 2 * j + 1}")
                for j in range(2):
                    q = qq * 2 + j
                    a(f"buffer_store_dwordx2 {vr(O + 2 * j, 2)}, v{2 + sm}, s[12:15], s16 offen offset:{(sn * 32 + 8 * q) * 2}")
    a.label("G1_END")
    a("s_endpgm")
    a.raw(kd("gemm1_kernel", 128))


G2_WGS = 256
G2_LDS = 4 * 3 * 10240


def gen_gemm2(a):
    a.raw(".text")
    a.raw(".globl gemm2_kernel")
    a.raw(".p2align 8")
    a.raw(".type gemm2_kernel,@function")
    a.label("gemm2_kernel")
    a(f"s_cmp_ge_u32 s2, {G2_WGS}")
    a("s_cbranch_scc1 G2_END")
    a("s_load_dwordx4 s[28:31], s[0:1], 16")
    a("s_load_dwordx2 s[32:33], s[0:1], 40")
    a("s_and_b32 s24, s2, 7")
    a("s_lshr_b32 s25, s2, 3")
    a("s_and_b32 s26, s24, 3")
    a("s_lshl_b32 s26, s26, 3")
    a("s_and_b32 s27, s25, 7")
    a("s_add_u32 s26, s26, s27")
    a("s_lshr_b32 s24, s24, 2")
    a("s_lshl_b32 s24, s24, 2")
    a("s_lshr_b32 s25, s25, 3")
    a("s_add_u32 s24, s24, s25")
    a("s_lshl_b32 s20, s26, 6")
    a("s_mul_i32 s21, s24, 80")
    a("v_lshrrev_b32 v1, 6, v0")
    a("v_and_b32 v12, 63, v0")
    a("v_readfirstlane_b32 s19, v1")
    a("v_mov_b32 v1, v12")
    for j in range(5):
        a(f"v_add_u32 v12, {64 * j}, v1")
        a("v_mul_u32_u24 v13, 205, v12")
        a("v_lshrrev_b32 v13, 11, v13")
        a("v_mul_u32_u24 v14, 10, v13")
        a("v_sub_u32 v14, v12, v14")
        a("v_and_b32 v15, 0x33, v13")
        a("v_and_b32 v12, 4, v13")
        a("v_lshlrev_b32 v12, 1, v12")
        a("v_or_b32 v15, v15, v12")
        a("v_and_b32 v12, 8, v13")
        a("v_lshrrev_b32 v12, 1, v12")
        a("v_or_b32 v15, v15, v12")
        a("v_mul_u32_u24 v15, 0x500, v15")
        a("v_lshlrev_b32 v14, 4, v14")
        a(f"v_add_u32 v{2 + j}, v15, v14")
    a("v_and_b32 v12, 15, v1")
    a("v_add_u32 v12, s20, v12")
    a("v_mul_u32_u24 v12, 0xd80, v12")
    a("v_lshrrev_b32 v13, 4, v1")
    a("v_lshlrev_b32 v13, 4, v13")
    a("v_add_u32 v7, v12, v13")
    for f in range(1, 4):
        a(f"v_add_u32 v{7 + f}, {16 * 3456 * f}, v7")
    a("v_lshrrev_b32 v12, 5, v1")
    a("v_lshlrev_b32 v12, 4, v12")
    a("v_lshrrev_b32 v13, 4, v1")
    a("v_and_b32 v13, 1, v13")
    a("v_lshlrev_b32 v13, 2, v13")
    a("v_add_u32 v12, v12, v13")
    a("v_and_b32 v13, 15, v1")
    a("v_lshrrev_b32 v13, 2, v13")
    a("v_add_u32 v12, v12, v13")
    a("v_mul_u32_u24 v12, 160, v12")
    a("v_and_b32 v13, 3, v1")
    a("v_lshlrev_b32 v13, 3, v13")
    a("v_add_u32 v12, v12, v13")
    a("s_mul_i32 s18, s19, 30720")
    a("v_add_u32 v11, s18, v12")
    a("s_mul_i32 s17, s19, 81920")
    a("s_lshl_b32 s24, s21, 1")
    a("s_add_u32 s17, s17, s24")
    a("s_lshl_b32 s23, s19, 7")
    a("s_waitcnt lgkmcnt(0)")
    srd(a, 4, 32, H_BYTES)
    srd(a, 8, 28, W2_BYTES)
    srd(a, 12, 30, O_BYTES)
    a("s_nop 4")

    AFR = [16, 36]
    HB = 56
    ACC = 152

    a.reset_track()

    def vm_ops(t):
        b = t % 3
        ops = []
        tag = ("st", t)
        for j in range(10):
            def f(j=j):
                a(f"s_add_u32 m0, s18, {b * 10240 + j * 1024}")
                a(f"s_add_u32 s16, s17, {t * 327680 + (40960 if j >= 5 else 0)}")
                a.vm(f"buffer_load_dwordx4 v{2 + j % 5}, s[8:11], s16 offen lds", tag)
            ops.append(f)
        hops = []
        for f_ in range(4):
            for kk in range(2):
                def g(f_=f_, kk=kk):
                    a(f"s_add_u32 s22, s23, {t * 512}")
                    a.vm(f"buffer_load_dwordx4 {vr(HB + b * 32 + (f_ * 2 + kk) * 4, 4)}, v{7 + f_}, s[4:7], s22 offen offset:{kk * 64}", tag)
                hops.append(g)
        out = []
        while ops or hops:
            if ops:
                out.append(ops.pop(0))
            if hops:
                out.append(hops.pop(0))
        return out

    def rd_ops(t, kk):
        b = t % 3
        ops = []
        for ns in range(5):
            for second in range(2):
                ops.append(lambda ns=ns, second=second: a.ds(
                    f"ds_read_b64_tr_b16 {vr(AFR[kk] + ns * 4 + second * 2, 2)}, v11 offset:{b * 10240 + kk * 32 * 160 + second * 8 * 160 + ns * 32}", ("fr", t, kk)))
        return ops

    def half(t, kk, cnt):
        b = t % 3
        a.wait(ltag=("fr", t, kk))
        if kk == 1 and t + 1 < cnt:
            a.wait(vtag=("st", t + 1))
        mf = []
        for f_ in range(4):
            for ns in range(5):
                c = ACC + (f_ * 5 + ns) * 4
                src = "0" if (t == 0 and kk == 0) else vr(c, 4)
                mf.append(f"v_mfma_f32_16x16x32_bf16 {vr(c, 4)}, {vr(AFR[kk] + ns * 4, 4)}, {vr(HB + b * 32 + (f_ * 2 + kk) * 4, 4)}, {src}")
        if kk == 0:
            rd = rd_ops(t, 1)
        elif t + 1 < cnt:
            rd = rd_ops(t + 1, 0)
        else:
            rd = []
        vm = vm_ops(t + 2)[kk * 9:kk * 9 + 9] if t + 2 < cnt else []
        fill = []
        while rd or vm:
            if rd:
                fill.append(rd.pop(0))
            if vm:
                fill.append(vm.pop(0))
        interleave(a, mf, fill)

    for f in vm_ops(0):
        f()
    for f in vm_ops(1):
        f()
    a.wait(vtag=("st", 0))
    for f in rd_ops(0, 0):
        f()
    for t in range(4):
        half(t, 0, 7)
        half(t, 1, 7)
    a("s_cmp_eq_u32 s19, 3")
    a("s_cbranch_scc1 G2_SHORT")
    saved = (list(a.vq), list(a.lq))
    for t in range(4, 7):
        half(t, 0, 7)
        half(t, 1, 7)
    a("s_branch G2_RED")
    a.label("G2_SHORT")
    a.vq, a.lq = list(saved[0]), list(saved[1])
    for t in range(4, 6):
        half(t, 0, 6)
        half(t, 1, 6)
    a.label("G2_RED")
    a("v_lshlrev_b32 v12, 4, v1")
    a("s_mul_i32 s24, s19, 20480")
    a("v_add_u32 v13, s24, v12")
    a("s_mul_i32 s24, s19, 5120")
    a("v_add_u32 v14, s24, v12")
    a("v_add_u32 v15, 40960, v14")
    a("s_nop 7")
    a("s_barrier")
    for f in range(4):
        for ns in range(5):
            a(f"ds_write_b128 v13, {vr(ACC + (f * 5 + ns) * 4, 4)} offset:{(f * 5 + ns) * 1024}")
    a("s_waitcnt lgkmcnt(0)")
    a("s_barrier")
    R = 16
    for src in range(4):
        for ns in range(5):
            a(f"ds_read_b128 {vr(R + (src * 5 + ns) * 4, 4)}, v{14 + (src >> 1)} offset:{(src & 1) * 20480 + ns * 1024}")
    a("v_and_b32 v12, 15, v1")
    a("s_lshl_b32 s24, s19, 4")
    a("s_add_u32 s24, s24, s20")
    a("v_add_u32 v12, s24, v12")
    a("v_mul_u32_u24 v12, 0x500, v12")
    a("v_lshrrev_b32 v13, 4, v1")
    a("v_lshlrev_b32 v13, 3, v13")
    a("s_lshl_b32 s24, s21, 1")
    a("v_add_u32 v13, s24, v13")
    a("v_add_u32 v12, v12, v13")
    a("s_waitcnt lgkmcnt(0)")
    for ns in range(5):
        for r in range(2):
            d0 = R + ns * 4 + r * 2
            for src in range(1, 4):
                a(f"v_pk_add_f32 {vr(d0, 2)}, {vr(d0, 2)}, {vr(R + (src * 5 + ns) * 4 + r * 2, 2)}")
    for ns in range(5):
        d0 = R + ns * 4
        a(f"v_cvt_pk_bf16_f32 v{100 + ns * 2}, v{d0}, v{d0 + 1}")
        a(f"v_cvt_pk_bf16_f32 v{101 + ns * 2}, v{d0 + 2}, v{d0 + 3}")
    for ns in range(5):
        a(f"buffer_store_dwordx2 {vr(100 + ns * 2, 2)}, v12, s[12:15], 0 offen offset:{ns * 32}")
    a.label("G2_END")
    a("s_endpgm")
    a.raw(kd("gemm2_kernel", 232))


def main():
    for c in range(320):
        assert (c * 205) >> 11 == c // 10
    a = Asm()
    a.raw(HEADER.format(g1=G1_WGS, l1=G1_LDS, g2=G2_WGS, l2=G2_LDS).rstrip("\n"))
    gen_gemm1(a)
    gen_gemm2(a)
    open(OUT, "w").write(a.text())
    print("wrote", OUT, len(a.lines), "lines")


main()
```

```python
import os, sys
NO_VMEM = os.environ.get("NO_VMEM") == "1"
NO_MFMA = os.environ.get("NO_MFMA") == "1"
NO_EPI = os.environ.get("NO_EPI") == "1"

OUT = sys.argv[1] if len(sys.argv) > 1 else "standalone__dense_activation_silu__prompt.s"

M, D, F = 2048, 640, 1728
X_BYTES = M * D * 2
W1_BYTES = D * F * 2
W2_BYTES = F * D * 2
H_BYTES = M * F * 2
O_BYTES = M * D * 2
W2P_OFF = 8 << 20
WS_BYTES = W2P_OFF + W2_BYTES


class Asm:
    def __init__(self):
        self.lines = []

    def __call__(self, s):
        self.lines.append("    " + s)

    def raw(self, s):
        self.lines.append(s)

    def label(self, s):
        self.lines.append(s + ":")

    def text(self):
        return "\n".join(self.lines) + "\n"

    def reset_track(self):
        self.vq = []
        self.lq = []

    def vm(self, s, tag):
        if NO_VMEM:
            return
        self(s)
        self.vq.append(tag)

    def ds(self, s, tag):
        self(s)
        self.lq.append(tag)

    def _n_after(self, q, tag):
        idx = [i for i, t in enumerate(q) if t == tag]
        if not idx:
            return None
        return len(q) - 1 - idx[-1]

    def wait(self, vtag=None, ltag=None):
        parts = []
        if vtag is not None:
            n = self._n_after(self.vq, vtag)
            if n is not None:
                assert n <= 63
                parts.append(f"vmcnt({n})")
                self.vq = self.vq[len(self.vq) - n:] if n else []
        if ltag is not None:
            n = self._n_after(self.lq, ltag)
            if n is not None:
                assert n <= 15, n
                parts.append(f"lgkmcnt({n})")
                self.lq = self.lq[len(self.lq) - n:] if n else []
        if parts:
            self("s_waitcnt " + " ".join(parts))


def interleave(a, mfmas, fillers):
    n = len(mfmas)
    k = len(fillers)
    j = 0
    for i, m in enumerate(mfmas):
        if not NO_MFMA:
            a(m)
        tgt = (i + 1) * k // n
        while j < tgt:
            fillers[j]()
            j += 1


def vr(a, n):
    return f"v[{a}:{a + n - 1}]"


HEADER = """; Kernarg layout for this problem (48 bytes, ptrs only, base s[0:1]):
; @launch kernel=gemm1_kernel grid=({g1},1,1) block=(256,1,1) lds={l1}
; @launch kernel=gemm2_kernel grid=({g2},1,1) block=(256,1,1) lds={l2}
.amdgcn_target "amdgcn-amd-amdhsa--gfx950"
"""


def kd(name, vgpr, sgpr=64):
    acc = (vgpr + 3) // 4 * 4
    return f""".section .rodata,"a"
.p2align 6
.amdhsa_kernel {name}
  .amdhsa_next_free_vgpr {vgpr}
  .amdhsa_next_free_sgpr {sgpr}
  .amdhsa_accum_offset {acc}
  .amdhsa_group_segment_fixed_size 0
  .amdhsa_kernarg_size 48
  .amdhsa_user_sgpr_count 2
  .amdhsa_user_sgpr_kernarg_segment_ptr 1
  .amdhsa_system_sgpr_workgroup_id_x 1
.end_amdhsa_kernel
"""


def srd(a, sd, sp, nbytes):
    a(f"s_mov_b32 s{sd}, s{sp}")
    a(f"s_and_b32 s{sd + 1}, s{sp + 1}, 0xffff")
    a(f"s_mov_b32 s{sd + 2}, {nbytes}")
    a(f"s_mov_b32 s{sd + 3}, 0x00020000")


def emit_voffw(a):
    for j in range(5):
        a(f"v_add_u32 v12, {64 * j}, v1")
        a("v_mul_u32_u24 v13, 205, v12")
        a("v_lshrrev_b32 v13, 11, v13")
        a("v_mul_u32_u24 v14, 10, v13")
        a("v_sub_u32 v14, v12, v14")
        a("v_and_b32 v15, 0x33, v13")
        a("v_and_b32 v12, 4, v13")
        a("v_lshlrev_b32 v12, 1, v12")
        a("v_or_b32 v15, v15, v12")
        a("v_and_b32 v12, 8, v13")
        a("v_lshrrev_b32 v12, 1, v12")
        a("v_or_b32 v15, v15, v12")
        a("v_mul_u32_u24 v15, 0x500, v15")
        a("v_lshlrev_b32 v14, 4, v14")
        a(f"v_add_u32 v{2 + j}, v15, v14")


G1_TILES = 16 * 14
G1_WGS = 256
G1_LDS = 4 * 32768


def gen_gemm1(a):
    KS = D // 64
    a.raw(".text")
    a.raw(".globl gemm1_kernel")
    a.raw(".p2align 8")
    a.raw(".type gemm1_kernel,@function")
    a.label("gemm1_kernel")
    a(f"s_cmp_ge_u32 s2, {G1_WGS}")
    a("s_cbranch_scc1 G1_END")
    a("s_load_dwordx4 s[28:31], s[0:1], 0")
    a("s_load_dwordx2 s[32:33], s[0:1], 40")
    a(f"s_cmp_ge_u32 s2, {G1_TILES}")
    a("s_cbranch_scc1 G1_REPACK")
    a("s_and_b32 s24, s2, 7")
    a("s_lshr_b32 s25, s2, 3")
    a("s_and_b32 s26, s24, 3")
    a("s_lshl_b32 s26, s26, 2")
    a("s_and_b32 s27, s25, 3")
    a("s_add_u32 s26, s26, s27")
    a("s_lshr_b32 s24, s24, 2")
    a("s_mul_i32 s24, s24, 7")
    a("s_lshr_b32 s25, s25, 2")
    a("s_add_u32 s24, s24, s25")
    a("s_lshl_b32 s22, s26, 7")
    a("s_lshl_b32 s23, s24, 7")
    a("v_lshrrev_b32 v1, 6, v0")
    a("v_and_b32 v17, 63, v0")
    a("v_readfirstlane_b32 s21, v1")
    a("v_mov_b32 v1, v17")
    a("v_lshrrev_b32 v18, 3, v1")
    a("v_mul_u32_u24 v18, 0x500, v18")
    a("v_and_b32 v19, 7, v1")
    a("v_lshrrev_b32 v20, 4, v1")
    a("v_xor_b32 v21, v19, v20")
    a("v_lshlrev_b32 v21, 4, v21")
    a("v_add_u32 v2, v18, v21")
    a("v_xor_b32 v21, 4, v21" if False else "v_xor_b32 v21, v19, v20")
    a("v_xor_b32 v21, 4, v21")
    a("v_lshlrev_b32 v21, 4, v21")
    a("v_add_u32 v3, v18, v21")
    a("v_mul_u32_u24 v18, 0xd80, v20")
    a("v_and_b32 v19, 15, v1")
    a("v_lshlrev_b32 v21, 2, v20")
    a("v_xor_b32 v19, v19, v21")
    a("v_lshlrev_b32 v19, 4, v19")
    a("v_add_u32 v4, v18, v19")
    a("s_and_b32 s34, s21, 1")
    a("s_lshr_b32 s35, s21, 1")
    a("s_lshl_b32 s24, s21, 5")
    a("s_add_u32 s24, s24, s22")
    a("s_mul_i32 s17, s24, 1280")
    a("s_mul_i32 s18, s21, %d" % (16 * 3456))
    a("s_lshl_b32 s24, s23, 1")
    a("s_add_u32 s18, s18, s24")
    a("s_lshl_b32 s19, s21, 12")
    a("s_add_u32 s20, s19, 16384")
    a("v_and_b32 v18, 31, v1")
    a("s_lshl_b32 s24, s34, 6")
    a("v_add_u32 v18, s24, v18")
    a("v_lshrrev_b32 v19, 1, v18")
    a("v_and_b32 v19, 7, v19")
    a("v_lshrrev_b32 v20, 5, v1")
    a("v_xor_b32 v19, v19, v20")
    a("v_lshlrev_b32 v18, 7, v18")
    for kk in range(4):
        a(f"v_xor_b32 v20, {2 * kk}, v19")
        a("v_lshlrev_b32 v20, 4, v20")
        a(f"v_add_u32 v{5 + kk}, v18, v20")
        a(f"v_add_u32 v{9 + kk}, 0x10000, v{5 + kk}")
    a("v_lshrrev_b32 v18, 5, v1")
    a("v_lshlrev_b32 v18, 3, v18")
    a("v_and_b32 v19, 15, v1")
    a("v_lshrrev_b32 v19, 2, v19")
    a("v_add_u32 v18, v18, v19")
    a("v_lshlrev_b32 v18, 8, v18")
    a("v_and_b32 v20, 1, v1")
    a("v_lshlrev_b32 v20, 3, v20")
    a("v_add_u32 v18, v18, v20")
    a("v_add_u32 v18, 0x4000, v18")
    a("v_lshrrev_b32 v20, 4, v1")
    a("v_and_b32 v20, 1, v20")
    a("v_lshlrev_b32 v20, 1, v20")
    a("v_and_b32 v21, 3, v1")
    a("v_lshrrev_b32 v21, 1, v21")
    a("v_add_u32 v20, v20, v21")
    a("s_lshl_b32 s24, s35, 3")
    a("v_add_u32 v20, s24, v20")
    a("v_lshlrev_b32 v19, 2, v19")
    for sn in range(2):
        a(f"v_add_u32 v21, {4 * sn}, v20")
        a("v_xor_b32 v21, v21, v19")
        a("v_lshlrev_b32 v21, 4, v21")
        a(f"v_add_u32 v{13 + sn}, v18, v21")
        a(f"v_add_u32 v{15 + sn}, 0x10000, v{13 + sn}")
    a("s_waitcnt lgkmcnt(0)")
    srd(a, 4, 28, X_BYTES)
    srd(a, 8, 30, W1_BYTES)
    srd(a, 12, 32, H_BYTES)
    a("s_nop 4")

    a.reset_track()

    def dma(stage, j):
        buf = stage % 4
        jj = j & 3

        def f():
            if j < 4:
                a(f"s_add_u32 m0, s19, {buf * 32768 + jj * 1024}")
                a(f"s_add_u32 s16, s17, {8 * jj * 1280 + stage * 128}")
                a.vm(f"buffer_load_dwordx4 v{2 + (jj & 1)}, s[4:7], s16 offen lds", ("st", stage))
            else:
                a(f"s_add_u32 m0, s20, {buf * 32768 + jj * 1024}")
                a(f"s_add_u32 s16, s18, {(stage * 64 + 4 * jj) * 3456}")
                a.vm("buffer_load_dwordx4 v4, s[8:11], s16 offen lds", ("st", stage))
        return f

    AF = [32, 40]
    BF = [48, 56]
    ACC = 64

    def read_ops(stage, kk, st):
        buf = stage % 4
        hi = buf >= 2
        boff = (buf & 1) * 32768
        ops = []
        tag = ("fr", stage, kk)
        for sm in range(2):
            br = (9 if hi else 5) + kk
            ops.append(lambda br=br, sm=sm: a.ds(f"ds_read_b128 {vr(BF[st] + sm * 4, 4)}, v{br} offset:{boff + sm * 4096}", tag))
            sn = sm
            ar = (15 if hi else 13) + sn
            for second in range(2):
                ops.append(lambda ar=ar, sn=sn, second=second: a.ds(
                    f"ds_read_b64_tr_b16 {vr(AF[st] + sn * 4 + second * 2, 2)}, v{ar} offset:{boff + kk * 4096 + second * 1024}", tag))
        return ops

    def dma_for(i, kk):
        if kk == 3:
            s_, p = i + 4, 0
        else:
            s_, p = i + 3, kk + 1
        if s_ >= KS:
            return []
        return [dma(s_, p), dma(s_, 4 + p)]

    for s_ in range(3):
        for j in (0, 4, 1, 5, 2, 6, 3, 7):
            dma(s_, j)()
    for f in dma_for(-1, 3):
        f()
    a.wait(vtag=("st", 0))
    a("s_barrier")
    for f in read_ops(0, 0, 0):
        f()
    for i in range(KS):
        for kk in range(4):
            st = kk & 1
            a.wait(ltag=("fr", i, kk))
            if kk == 3 and i + 1 < KS:
                a.wait(vtag=("st", i + 1))
                a("s_barrier")
            mf = []
            for sn in range(2):
                for sm in range(2):
                    c = ACC + (sn * 2 + sm) * 16
                    src = "0" if (i == 0 and kk == 0) else vr(c, 16)
                    mf.append(f"v_mfma_f32_32x32x16_bf16 {vr(c, 16)}, {vr(AF[st] + sn * 4, 4)}, {vr(BF[st] + sm * 4, 4)}, {src}")
            if kk < 3:
                rd = read_ops(i, kk + 1, st ^ 1)
            elif i + 1 < KS:
                rd = read_ops(i + 1, 0, st ^ 1)
            else:
                rd = []
            dm = dma_for(i, kk)
            fill = []
            if rd:
                fill = [rd[0], rd[1], rd[2]] + dm[:1] + [rd[3], rd[4], rd[5]] + dm[1:]
            else:
                fill = dm
            interleave(a, mf, fill)
    if NO_EPI:
        a("s_branch G1_END")
    a("s_lshl_b32 s24, s35, 6")
    a("s_add_u32 s24, s24, s23")
    a(f"s_cmp_ge_u32 s24, {F}")
    a("s_cbranch_scc1 G1_END")
    a("v_lshrrev_b32 v18, 4, v1")
    a("v_and_b32 v18, 1, v18")
    a("s_lshl_b32 s24, s34, 2")
    a("v_add_u32 v18, s24, v18")
    a(f"v_mul_u32_u24 v18, {54 * 1024}, v18")
    a("v_lshrrev_b32 v19, 5, v1")
    a("v_lshlrev_b32 v19, 4, v19")
    a("v_and_b32 v20, 15, v1")
    a("v_add_u32 v19, v19, v20")
    a("v_lshlrev_b32 v19, 4, v19")
    a("v_add_u32 v2, v18, v19")
    a(f"v_add_u32 v3, {2 * 54 * 1024}, v2")
    a("s_lshr_b32 s16, s22, 4")
    a("s_mul_i32 s16, s16, 54")
    a("s_lshl_b32 s24, s35, 6")
    a("s_add_u32 s24, s24, s23")
    a("s_lshr_b32 s24, s24, 5")
    a("s_add_u32 s16, s16, s24")
    a("s_lshl_b32 s16, s16, 10")
    a("s_mov_b32 s36, 0xbfb8aa3b")
    a("s_mov_b32 s37, 0xbfb8aa3b")
    a("s_mov_b32 s38, 0xffff0000")
    a("s_nop 15")
    for sn in range(2):
        for sm in range(2):
            c = ACC + (sn * 2 + sm) * 16
            for qq in range(2):
                X = 32
                E = 40
                P = 48
                for j in range(4):
                    a(f"v_cvt_pk_bf16_f32 v{P + j}, v{c + qq * 8 + 2 * j}, v{c + qq * 8 + 2 * j + 1}")
                for j in range(4):
                    a(f"v_lshlrev_b32 v{X + 2 * j}, 16, v{P + j}")
                    a(f"v_and_b32 v{X + 2 * j + 1}, s38, v{P + j}")
                for j in range(4):
                    a(f"v_pk_mul_f32 {vr(E + 2 * j, 2)}, {vr(X + 2 * j, 2)}, s[36:37]")
                for j in range(8):
                    a(f"v_exp_f32 v{E + j}, v{E + j}")
                for j in range(4):
                    a(f"v_pk_add_f32 {vr(E + 2 * j, 2)}, {vr(E + 2 * j, 2)}, 1.0 op_sel_hi:[1,0]")
                for j in range(8):
                    a(f"v_rcp_f32 v{E + j}, v{E + j}")
                for j in range(4):
                    a(f"v_pk_mul_f32 {vr(X + 2 * j, 2)}, {vr(X + 2 * j, 2)}, {vr(E + 2 * j, 2)}")
                O = 52 + (qq * 4)
                for j in range(4):
                    a(f"v_cvt_pk_bf16_f32 v{O + j}, v{X + 2 * j}, v{X + 2 * j + 1}")
                a("s_nop 1")
                a(f"v_permlane32_swap_b32 v{O}, v{O + 2}")
                a(f"v_permlane32_swap_b32 v{O + 1}, v{O + 3}")
                a(f"buffer_store_dwordx4 {vr(O, 4)}, v{2 + sm}, s[12:15], s16 offen offset:{sn * 1024 + qq * 512}")
    a("s_endpgm")
    a.label("G1_REPACK")
    a("s_load_dwordx2 s[36:37], s[0:1], 16")
    a("v_lshrrev_b32 v1, 6, v0")
    a("v_and_b32 v12, 63, v0")
    a("v_readfirstlane_b32 s21, v1")
    a("v_mov_b32 v1, v12")
    emit_voffw(a)
    a("v_lshlrev_b32 v7, 4, v1")
    a(f"s_sub_u32 s22, s2, {G1_TILES}")
    a("s_lshl_b32 s22, s22, 2")
    a("s_add_u32 s22, s22, s21")
    a("s_waitcnt lgkmcnt(0)")
    srd(a, 8, 36, W2_BYTES)
    srd(a, 12, 32, WS_BYTES)
    a("s_nop 4")
    for it in range(4):
        a(f"s_add_u32 s23, s22, {128 * it}")
        if it == 3:
            a("s_cmp_ge_u32 s23, 432")
            a("s_cbranch_scc1 G1_END")
        a("s_lshr_b32 s24, s23, 1")
        a("s_mul_i32 s25, s24, 1214")
        a("s_lshr_b32 s25, s25, 15")
        a("s_mul_i32 s26, s25, 27")
        a("s_sub_u32 s26, s24, s26")
        a("s_and_b32 s27, s23, 1")
        a("s_lshl_b32 s26, s26, 1")
        a("s_add_u32 s26, s26, s27")
        a("s_mul_i32 s26, s26, 40960")
        a("s_mul_i32 s25, s25, 160")
        a("s_add_u32 s26, s26, s25")
        a("s_mul_i32 s27, s23, 5120")
        a(f"s_add_u32 s27, s27, {W2P_OFF}")
        for j in range(5):
            a(f"buffer_load_dwordx4 {vr(16 + j * 4, 4)}, v{2 + j}, s[8:11], s26 offen")
        a("s_waitcnt vmcnt(0)")
        for j in range(5):
            if j < 4:
                a(f"buffer_store_dwordx4 {vr(16 + j * 4, 4)}, v7, s[12:15], s27 offen offset:{j * 1024}")
            else:
                a("s_add_u32 s27, s27, 4096")
                a(f"buffer_store_dwordx4 {vr(16 + j * 4, 4)}, v7, s[12:15], s27 offen")
        a("s_waitcnt vmcnt(0)")
    a.label("G1_END")
    a("s_endpgm")
    a.raw(kd("gemm1_kernel", 128))


G2_WGS = 256
G2_LDS = 4 * 3 * 10240


def gen_gemm2(a):
    a.raw(".text")
    a.raw(".globl gemm2_kernel")
    a.raw(".p2align 8")
    a.raw(".type gemm2_kernel,@function")
    a.label("gemm2_kernel")
    a(f"s_cmp_ge_u32 s2, {G2_WGS}")
    a("s_cbranch_scc1 G2_END")
    a("s_load_dwordx4 s[28:31], s[0:1], 16")
    a("s_load_dwordx2 s[32:33], s[0:1], 40")
    a("s_and_b32 s24, s2, 7")
    a("s_lshr_b32 s25, s2, 3")
    a("s_and_b32 s26, s24, 3")
    a("s_lshl_b32 s26, s26, 3")
    a("s_and_b32 s27, s25, 7")
    a("s_add_u32 s26, s26, s27")
    a("s_lshr_b32 s24, s24, 2")
    a("s_lshl_b32 s24, s24, 2")
    a("s_lshr_b32 s25, s25, 3")
    a("s_add_u32 s34, s24, s25")
    a("s_lshl_b32 s20, s26, 6")
    a("s_mul_i32 s21, s34, 80")
    a("v_lshrrev_b32 v1, 6, v0")
    a("v_and_b32 v12, 63, v0")
    a("v_readfirstlane_b32 s19, v1")
    a("v_mov_b32 v1, v12")
    a("v_lshlrev_b32 v2, 4, v1")
    a("s_lshr_b32 s24, s20, 4")
    a(f"s_mul_i32 s24, s24, {54 * 1024}")
    a("v_add_u32 v7, s24, v2")
    for f in range(1, 4):
        a(f"v_add_u32 v{7 + f}, {54 * 1024 * f}, v7")
    a("v_lshrrev_b32 v12, 5, v1")
    a("v_lshlrev_b32 v12, 4, v12")
    a("v_lshrrev_b32 v13, 4, v1")
    a("v_and_b32 v13, 1, v13")
    a("v_lshlrev_b32 v13, 2, v13")
    a("v_add_u32 v12, v12, v13")
    a("v_and_b32 v13, 15, v1")
    a("v_lshrrev_b32 v13, 2, v13")
    a("v_add_u32 v12, v12, v13")
    a("v_mul_u32_u24 v12, 160, v12")
    a("v_and_b32 v13, 3, v1")
    a("v_lshlrev_b32 v13, 3, v13")
    a("v_add_u32 v12, v12, v13")
    a("s_mul_i32 s18, s19, 30720")
    a("v_add_u32 v11, s18, v12")
    a("s_mul_i32 s17, s34, 27")
    a("s_add_u32 s17, s17, s19")
    a("s_mul_i32 s17, s17, 10240")
    a(f"s_add_u32 s17, s17, {W2P_OFF}")
    a("s_lshl_b32 s23, s19, 11")
    a("s_waitcnt lgkmcnt(0)")
    srd(a, 4, 32, H_BYTES)
    srd(a, 8, 32, WS_BYTES)
    srd(a, 12, 30, O_BYTES)
    a("s_nop 4")

    AFR = [16, 36]
    HB = 56
    ACC = 152

    a.reset_track()

    def vm_ops(t):
        b = t % 3
        ops = []
        tag = ("st", t)
        for j in range(10):
            def f(j=j):
                a(f"s_add_u32 m0, s18, {b * 10240 + j * 1024}")
                a(f"s_add_u32 s16, s17, {t * 40960 + j * 1024}")
                a.vm(f"buffer_load_dwordx4 v2, s[8:11], s16 offen lds", tag)
            ops.append(f)
        hops = []
        for f_ in range(4):
            for kk in range(2):
                def g(f_=f_, kk=kk):
                    a(f"s_add_u32 s22, s23, {t * 8192}")
                    a.vm(f"buffer_load_dwordx4 {vr(HB + b * 32 + (f_ * 2 + kk) * 4, 4)}, v{7 + f_}, s[4:7], s22 offen offset:{kk * 1024}", tag)
                hops.append(g)
        out = []
        while ops or hops:
            if ops:
                out.append(ops.pop(0))
            if hops:
                out.append(hops.pop(0))
        return out

    def rd_ops(t, kk):
        b = t % 3
        ops = []
        for ns in range(5):
            for second in range(2):
                ops.append(lambda ns=ns, second=second: a.ds(
                    f"ds_read_b64_tr_b16 {vr(AFR[kk] + ns * 4 + second * 2, 2)}, v11 offset:{b * 10240 + kk * 32 * 160 + second * 8 * 160 + ns * 32}", ("fr", t, kk)))
        return ops

    def half(t, kk, cnt):
        b = t % 3
        a.wait(ltag=("fr", t, kk))
        if kk == 1 and t + 1 < cnt:
            a.wait(vtag=("st", t + 1))
        mf = []
        for f_ in range(4):
            for ns in range(5):
                c = ACC + (f_ * 5 + ns) * 4
                src = "0" if (t == 0 and kk == 0) else vr(c, 4)
                mf.append(f"v_mfma_f32_16x16x32_bf16 {vr(c, 4)}, {vr(AFR[kk] + ns * 4, 4)}, {vr(HB + b * 32 + (f_ * 2 + kk) * 4, 4)}, {src}")
        if kk == 0:
            rd = rd_ops(t, 1)
        elif t + 1 < cnt:
            rd = rd_ops(t + 1, 0)
        else:
            rd = []
        vm = vm_ops(t + 2)[kk * 9:kk * 9 + 9] if t + 2 < cnt else []
        fill = []
        while rd or vm:
            if rd:
                fill.append(rd.pop(0))
            if vm:
                fill.append(vm.pop(0))
        interleave(a, mf, fill)

    for f in vm_ops(0):
        f()
    for f in vm_ops(1):
        f()
    a.wait(vtag=("st", 0))
    for f in rd_ops(0, 0):
        f()
    for t in range(4):
        half(t, 0, 7)
        half(t, 1, 7)
    a("s_cmp_eq_u32 s19, 3")
    a("s_cbranch_scc1 G2_SHORT")
    saved = (list(a.vq), list(a.lq))
    for t in range(4, 7):
        half(t, 0, 7)
        half(t, 1, 7)
    a("s_branch G2_RED")
    a.label("G2_SHORT")
    a.vq, a.lq = list(saved[0]), list(saved[1])
    for t in range(4, 6):
        half(t, 0, 6)
        half(t, 1, 6)
    a.label("G2_RED")
    a("v_lshlrev_b32 v12, 4, v1")
    a("s_mul_i32 s24, s19, 20480")
    a("v_add_u32 v13, s24, v12")
    a("s_mul_i32 s24, s19, 5120")
    a("v_add_u32 v14, s24, v12")
    a("v_add_u32 v15, 40960, v14")
    a("s_nop 7")
    a("s_barrier")
    for f in range(4):
        for ns in range(5):
            a(f"ds_write_b128 v13, {vr(ACC + (f * 5 + ns) * 4, 4)} offset:{(f * 5 + ns) * 1024}")
    a("s_waitcnt lgkmcnt(0)")
    a("s_barrier")
    R = 16
    for src in range(4):
        for ns in range(5):
            a(f"ds_read_b128 {vr(R + (src * 5 + ns) * 4, 4)}, v{14 + (src >> 1)} offset:{(src & 1) * 20480 + ns * 1024}")
    a("v_and_b32 v12, 15, v1")
    a("s_lshl_b32 s24, s19, 4")
    a("s_add_u32 s24, s24, s20")
    a("v_add_u32 v12, s24, v12")
    a("v_mul_u32_u24 v12, 0x500, v12")
    a("v_lshrrev_b32 v13, 4, v1")
    a("v_lshlrev_b32 v13, 3, v13")
    a("s_lshl_b32 s24, s21, 1")
    a("v_add_u32 v13, s24, v13")
    a("v_add_u32 v12, v12, v13")
    a("s_waitcnt lgkmcnt(0)")
    for ns in range(5):
        for r in range(2):
            d0 = R + ns * 4 + r * 2
            for src in range(1, 4):
                a(f"v_pk_add_f32 {vr(d0, 2)}, {vr(d0, 2)}, {vr(R + (src * 5 + ns) * 4 + r * 2, 2)}")
    for ns in range(5):
        d0 = R + ns * 4
        a(f"v_cvt_pk_bf16_f32 v{100 + ns * 2}, v{d0}, v{d0 + 1}")
        a(f"v_cvt_pk_bf16_f32 v{101 + ns * 2}, v{d0 + 2}, v{d0 + 3}")
    for ns in range(5):
        a(f"buffer_store_dwordx2 {vr(100 + ns * 2, 2)}, v12, s[12:15], 0 offen offset:{ns * 32}")
    a.label("G2_END")
    a("s_endpgm")
    a.raw(kd("gemm2_kernel", 232))


def main():
    for c in range(320):
        assert (c * 205) >> 11 == c // 10
    for b in range(216):
        assert (b * 1214) >> 15 == b // 27
    a = Asm()
    a.raw(HEADER.format(g1=G1_WGS, l1=G1_LDS, g2=G2_WGS, l2=G2_LDS).rstrip("\n"))
    gen_gemm1(a)
    gen_gemm2(a)
    open(OUT, "w").write(a.text())
    print("wrote", OUT, len(a.lines), "lines")


main()
```

```python
import os, sys
NO_VMEM = os.environ.get("NO_VMEM") == "1"
NO_MFMA = os.environ.get("NO_MFMA") == "1"
NO_EPI = os.environ.get("NO_EPI") == "1"
STAMP = os.environ.get("STAMP") == "1"
NO_ST = os.environ.get("NO_ST") == "1"
NO_SILU = os.environ.get("NO_SILU") == "1"

OUT = sys.argv[1] if len(sys.argv) > 1 else "standalone__dense_activation_silu__prompt.s"

M, D, F = 2048, 640, 1728
X_BYTES = M * D * 2
W1_BYTES = D * F * 2
W2_BYTES = F * D * 2
H_BYTES = M * F * 2
O_BYTES = M * D * 2
W2P_OFF = 8 << 20
WS_BYTES = (32 << 20) if os.environ.get("STAMP") == "1" else W2P_OFF + W2_BYTES


class Asm:
    def __init__(self):
        self.lines = []

    def __call__(self, s):
        self.lines.append("    " + s)

    def raw(self, s):
        self.lines.append(s)

    def label(self, s):
        self.lines.append(s + ":")

    def text(self):
        return "\n".join(self.lines) + "\n"

    def reset_track(self):
        self.vq = []
        self.lq = []

    def vm(self, s, tag):
        if NO_VMEM:
            return
        self(s)
        self.vq.append(tag)

    def ds(self, s, tag):
        self(s)
        self.lq.append(tag)

    def _n_after(self, q, tag):
        idx = [i for i, t in enumerate(q) if t == tag]
        if not idx:
            return None
        return len(q) - 1 - idx[-1]

    def wait(self, vtag=None, ltag=None):
        parts = []
        if vtag is not None:
            n = self._n_after(self.vq, vtag)
            if n is not None:
                assert n <= 63
                parts.append(f"vmcnt({n})")
                self.vq = self.vq[len(self.vq) - n:] if n else []
        if ltag is not None:
            n = self._n_after(self.lq, ltag)
            if n is not None:
                assert n <= 15, n
                parts.append(f"lgkmcnt({n})")
                self.lq = self.lq[len(self.lq) - n:] if n else []
        if parts:
            self("s_waitcnt " + " ".join(parts))


def interleave(a, mfmas, fillers):
    n = len(mfmas)
    k = len(fillers)
    j = 0
    for i, m in enumerate(mfmas):
        if not NO_MFMA:
            a(m)
        tgt = (i + 1) * k // n
        while j < tgt:
            fillers[j]()
            j += 1


def vr(a, n):
    return f"v[{a}:{a + n - 1}]"


HEADER = """; Kernarg layout for this problem (48 bytes, ptrs only, base s[0:1]):
; @launch grid=(256,1,1) block=(256,1,1) lds={l1}
.amdgcn_target "amdgcn-amd-amdhsa--gfx950"
"""
KNAME = "standalone__dense_activation_silu__prompt_kernel"


def kd(name, vgpr, sgpr=96):
    acc = (vgpr + 3) // 4 * 4
    return f""".section .rodata,"a"
.p2align 6
.amdhsa_kernel {name}
  .amdhsa_next_free_vgpr {vgpr}
  .amdhsa_next_free_sgpr {sgpr}
  .amdhsa_accum_offset {acc}
  .amdhsa_group_segment_fixed_size 0
  .amdhsa_kernarg_size 48
  .amdhsa_user_sgpr_count 2
  .amdhsa_user_sgpr_kernarg_segment_ptr 1
  .amdhsa_system_sgpr_workgroup_id_x 1
.end_amdhsa_kernel
"""


def stamp(a, idx, kern, wave_s, srd_s, real=False):
    if not STAMP:
        return
    if idx in (0, 4) and not real:
        stamp(a, idx + 8, kern, wave_s, srd_s, True)
    a("s_memrealtime s[60:61]" if real else "s_memtime s[60:61]")
    a("s_waitcnt lgkmcnt(0)")
    a(f"s_cmp_lg_u32 s{wave_s}, 0")
    a(f"s_cbranch_scc1 STAMP_SKIP_{kern}_{idx}")
    a("v_mov_b32 v250, s60")
    a("v_mov_b32 v251, s61")
    a(f"s_lshl_b32 s62, s2, 7")
    a(f"s_add_u32 s62, s62, {(16 << 20) + kern * 65536 + idx * 8}")
    a("v_mov_b32 v252, 0")
    a(f"buffer_store_dwordx2 v[250:251], v252, s[{srd_s}:{srd_s + 3}], s62 offen")
    a.label(f"STAMP_SKIP_{kern}_{idx}")


def srd(a, sd, sp, nbytes):
    a(f"s_mov_b32 s{sd}, s{sp}")
    a(f"s_and_b32 s{sd + 1}, s{sp + 1}, 0xffff")
    a(f"s_mov_b32 s{sd + 2}, {nbytes}")
    a(f"s_mov_b32 s{sd + 3}, 0x00020000")


def emit_voffw(a):
    for j in range(5):
        a(f"v_add_u32 v12, {64 * j}, v1")
        a("v_mul_u32_u24 v13, 205, v12")
        a("v_lshrrev_b32 v13, 11, v13")
        a("v_mul_u32_u24 v14, 10, v13")
        a("v_sub_u32 v14, v12, v14")
        a("v_and_b32 v15, 0x33, v13")
        a("v_and_b32 v12, 4, v13")
        a("v_lshlrev_b32 v12, 1, v12")
        a("v_or_b32 v15, v15, v12")
        a("v_and_b32 v12, 8, v13")
        a("v_lshrrev_b32 v12, 1, v12")
        a("v_or_b32 v15, v15, v12")
        a("v_mul_u32_u24 v15, 0x500, v15")
        a("v_lshlrev_b32 v14, 4, v14")
        a(f"v_add_u32 v{2 + j}, v15, v14")


G1_TILES = 16 * 14
G1_WGS = 256
G1_LDS = 4 * 32768


def gen_gemm1(a):
    KS = D // 64
    a.raw(".text")
    a.raw(f".globl {KNAME}")
    a.raw(".p2align 8")
    a.raw(f".type {KNAME},@function")
    a.label(KNAME)
    a(f"s_cmp_ge_u32 s2, {G1_WGS}")
    a("s_cbranch_scc1 K_END")
    a("s_load_dwordx8 s[64:71], s[0:1], 0")
    a("s_load_dwordx4 s[72:75], s[0:1], 32")
    a("v_lshrrev_b32 v1, 6, v0")
    a("v_and_b32 v17, 63, v0")
    a("v_readfirstlane_b32 s76, v1")
    a("v_mov_b32 v1, v17")
    a("s_nop 3")
    a("s_mov_b32 s21, s76")
    a(f"s_cmp_ge_u32 s2, {G1_TILES}")
    a("s_cbranch_scc1 G1_REPACK")
    a("s_and_b32 s24, s2, 7")
    a("s_lshr_b32 s25, s2, 3")
    a("s_and_b32 s26, s24, 3")
    a("s_lshl_b32 s26, s26, 2")
    a("s_and_b32 s27, s25, 3")
    a("s_add_u32 s26, s26, s27")
    a("s_lshr_b32 s24, s24, 2")
    a("s_mul_i32 s24, s24, 7")
    a("s_lshr_b32 s25, s25, 2")
    a("s_add_u32 s24, s24, s25")
    a("s_lshl_b32 s22, s26, 7")
    a("s_lshl_b32 s23, s24, 7")
    a("s_mov_b32 s77, s26")
    a("v_lshrrev_b32 v18, 3, v1")
    a("v_mul_u32_u24 v18, 0x500, v18")
    a("v_and_b32 v19, 7, v1")
    a("v_lshrrev_b32 v20, 4, v1")
    a("v_xor_b32 v21, v19, v20")
    a("v_lshlrev_b32 v21, 4, v21")
    a("v_add_u32 v2, v18, v21")
    a("v_xor_b32 v21, 4, v21" if False else "v_xor_b32 v21, v19, v20")
    a("v_xor_b32 v21, 4, v21")
    a("v_lshlrev_b32 v21, 4, v21")
    a("v_add_u32 v3, v18, v21")
    a("v_mul_u32_u24 v18, 0xd80, v20")
    a("v_and_b32 v19, 15, v1")
    a("v_lshlrev_b32 v21, 2, v20")
    a("v_xor_b32 v19, v19, v21")
    a("v_lshlrev_b32 v19, 4, v19")
    a("v_add_u32 v4, v18, v19")
    a("s_and_b32 s34, s21, 1")
    a("s_lshr_b32 s35, s21, 1")
    a("s_lshl_b32 s24, s21, 5")
    a("s_add_u32 s24, s24, s22")
    a("s_mul_i32 s17, s24, 1280")
    a("s_mul_i32 s18, s21, %d" % (16 * 3456))
    a("s_lshl_b32 s24, s23, 1")
    a("s_add_u32 s18, s18, s24")
    a("s_lshl_b32 s19, s21, 12")
    a("s_add_u32 s20, s19, 16384")
    a("v_and_b32 v18, 31, v1")
    a("s_lshl_b32 s24, s34, 6")
    a("v_add_u32 v18, s24, v18")
    a("v_lshrrev_b32 v19, 1, v18")
    a("v_and_b32 v19, 7, v19")
    a("v_lshrrev_b32 v20, 5, v1")
    a("v_xor_b32 v19, v19, v20")
    a("v_lshlrev_b32 v18, 7, v18")
    for kk in range(4):
        a(f"v_xor_b32 v20, {2 * kk}, v19")
        a("v_lshlrev_b32 v20, 4, v20")
        a(f"v_add_u32 v{5 + kk}, v18, v20")
        a(f"v_add_u32 v{9 + kk}, 0x10000, v{5 + kk}")
    a("v_lshrrev_b32 v18, 5, v1")
    a("v_lshlrev_b32 v18, 3, v18")
    a("v_and_b32 v19, 15, v1")
    a("v_lshrrev_b32 v19, 2, v19")
    a("v_add_u32 v18, v18, v19")
    a("v_lshlrev_b32 v18, 8, v18")
    a("v_and_b32 v20, 1, v1")
    a("v_lshlrev_b32 v20, 3, v20")
    a("v_add_u32 v18, v18, v20")
    a("v_add_u32 v18, 0x4000, v18")
    a("v_lshrrev_b32 v20, 4, v1")
    a("v_and_b32 v20, 1, v20")
    a("v_lshlrev_b32 v20, 1, v20")
    a("v_and_b32 v21, 3, v1")
    a("v_lshrrev_b32 v21, 1, v21")
    a("v_add_u32 v20, v20, v21")
    a("s_lshl_b32 s24, s35, 3")
    a("v_add_u32 v20, s24, v20")
    a("v_lshlrev_b32 v19, 2, v19")
    for sn in range(2):
        a(f"v_add_u32 v21, {4 * sn}, v20")
        a("v_xor_b32 v21, v21, v19")
        a("v_lshlrev_b32 v21, 4, v21")
        a(f"v_add_u32 v{13 + sn}, v18, v21")
        a(f"v_add_u32 v{15 + sn}, 0x10000, v{13 + sn}")
    a("s_waitcnt lgkmcnt(0)")
    srd(a, 4, 64, X_BYTES)
    srd(a, 8, 66, W1_BYTES)
    srd(a, 12, 74, H_BYTES)
    srd(a, 56, 74, WS_BYTES)
    a("s_nop 4")
    stamp(a, 0, 0, 21, 56)

    a.reset_track()

    def dma(stage, j):
        buf = stage % 4
        jj = j & 3

        def f():
            if j < 4:
                a(f"s_add_u32 m0, s19, {buf * 32768 + jj * 1024}")
                a(f"s_add_u32 s16, s17, {8 * jj * 1280 + stage * 128}")
                a.vm(f"buffer_load_dwordx4 v{2 + (jj & 1)}, s[4:7], s16 offen lds", ("st", stage))
            else:
                a(f"s_add_u32 m0, s20, {buf * 32768 + jj * 1024}")
                a(f"s_add_u32 s16, s18, {(stage * 64 + 4 * jj) * 3456}")
                a.vm("buffer_load_dwordx4 v4, s[8:11], s16 offen lds", ("st", stage))
        return f

    AF = [32, 40]
    BF = [48, 56]
    ACC = 64

    def read_ops(stage, kk, st):
        buf = stage % 4
        hi = buf >= 2
        boff = (buf & 1) * 32768
        ops = []
        tag = ("fr", stage, kk)
        for sm in range(2):
            br = (9 if hi else 5) + kk
            ops.append(lambda br=br, sm=sm: a.ds(f"ds_read_b128 {vr(BF[st] + sm * 4, 4)}, v{br} offset:{boff + sm * 4096}", tag))
            sn = sm
            ar = (15 if hi else 13) + sn
            for second in range(2):
                ops.append(lambda ar=ar, sn=sn, second=second: a.ds(
                    f"ds_read_b64_tr_b16 {vr(AF[st] + sn * 4 + second * 2, 2)}, v{ar} offset:{boff + kk * 4096 + second * 1024}", tag))
        return ops

    def dma_for(i, kk):
        if kk == 3:
            s_, p = i + 4, 0
        else:
            s_, p = i + 3, kk + 1
        if s_ >= KS:
            return []
        return [dma(s_, p), dma(s_, 4 + p)]

    for s_ in range(3):
        for j in (0, 4, 1, 5, 2, 6, 3, 7):
            dma(s_, j)()
    for f in dma_for(-1, 3):
        f()
    a.wait(vtag=("st", 0))
    a("s_barrier")
    if STAMP:
        a("s_waitcnt vmcnt(0)")
        a.vq = []
    stamp(a, 1, 0, 21, 56)
    for f in read_ops(0, 0, 0):
        f()
    for i in range(KS):
        for kk in range(4):
            st = kk & 1
            a.wait(ltag=("fr", i, kk))
            if kk == 3 and i + 1 < KS:
                a.wait(vtag=("st", i + 1))
                a("s_barrier")
            mf = []
            for sn in range(2):
                for sm in range(2):
                    c = ACC + (sn * 2 + sm) * 16
                    src = "0" if (i == 0 and kk == 0) else vr(c, 16)
                    mf.append(f"v_mfma_f32_32x32x16_bf16 {vr(c, 16)}, {vr(AF[st] + sn * 4, 4)}, {vr(BF[st] + sm * 4, 4)}, {src}")
            if kk < 3:
                rd = read_ops(i, kk + 1, st ^ 1)
            elif i + 1 < KS:
                rd = read_ops(i + 1, 0, st ^ 1)
            else:
                rd = []
            dm = dma_for(i, kk)
            fill = []
            if rd:
                fill = [rd[0], rd[1], rd[2]] + dm[:1] + [rd[3], rd[4], rd[5]] + dm[1:]
            else:
                fill = dm
            interleave(a, mf, fill)
    stamp(a, 2, 0, 21, 56)
    if NO_EPI:
        a("s_branch P1_SIGNAL")
    a("s_lshl_b32 s24, s35, 6")
    a("s_add_u32 s24, s24, s23")
    a(f"s_cmp_ge_u32 s24, {F}")
    a("s_cbranch_scc1 P1_SIGNAL")
    a("v_lshrrev_b32 v18, 4, v1")
    a("v_and_b32 v18, 1, v18")
    a("s_lshl_b32 s24, s34, 2")
    a("v_add_u32 v18, s24, v18")
    a(f"v_mul_u32_u24 v18, {54 * 1024}, v18")
    a("v_lshrrev_b32 v19, 5, v1")
    a("v_lshlrev_b32 v19, 4, v19")
    a("v_and_b32 v20, 15, v1")
    a("v_add_u32 v19, v19, v20")
    a("v_lshlrev_b32 v19, 4, v19")
    a("v_add_u32 v2, v18, v19")
    a(f"v_add_u32 v3, {2 * 54 * 1024}, v2")
    a("s_lshr_b32 s16, s22, 4")
    a("s_mul_i32 s16, s16, 54")
    a("s_lshl_b32 s24, s35, 6")
    a("s_add_u32 s24, s24, s23")
    a("s_lshr_b32 s24, s24, 5")
    a("s_add_u32 s16, s16, s24")
    a("s_lshl_b32 s16, s16, 10")
    a("s_mov_b32 s36, 0xbfb8aa3b")
    a("s_mov_b32 s37, 0xbfb8aa3b")
    a("s_mov_b32 s38, 0xffff0000")
    a("s_nop 15")
    for sn in range(2):
        for sm in range(2):
            c = ACC + (sn * 2 + sm) * 16
            for qq in range(2):
                X = 32
                E = 40
                P = 48
                for j in range(4):
                    a(f"v_cvt_pk_bf16_f32 v{P + j}, v{c + qq * 8 + 2 * j}, v{c + qq * 8 + 2 * j + 1}")
                for j in range(4):
                    a(f"v_lshlrev_b32 v{X + 2 * j}, 16, v{P + j}")
                    a(f"v_and_b32 v{X + 2 * j + 1}, s38, v{P + j}")
                for j in range(4):
                    a(f"v_pk_mul_f32 {vr(E + 2 * j, 2)}, {vr(X + 2 * j, 2)}, s[36:37]")
                for j in range(8):
                    if not NO_SILU:
                        a(f"v_exp_f32 v{E + j}, v{E + j}")
                for j in range(4):
                    a(f"v_pk_add_f32 {vr(E + 2 * j, 2)}, {vr(E + 2 * j, 2)}, 1.0 op_sel_hi:[1,0]")
                for j in range(8):
                    if not NO_SILU:
                        a(f"v_rcp_f32 v{E + j}, v{E + j}")
                for j in range(4):
                    a(f"v_pk_mul_f32 {vr(X + 2 * j, 2)}, {vr(X + 2 * j, 2)}, {vr(E + 2 * j, 2)}")
                O = 52 + (qq * 4)
                for j in range(4):
                    a(f"v_cvt_pk_bf16_f32 v{O + j}, v{X + 2 * j}, v{X + 2 * j + 1}")
                a("s_nop 1")
                a(f"v_permlane32_swap_b32 v{O}, v{O + 2}")
                a(f"v_permlane32_swap_b32 v{O + 1}, v{O + 3}")
                if not NO_ST:
                    a(f"buffer_store_dwordx4 {vr(O, 4)}, v{2 + sm}, s[12:15], s16 offen offset:{sn * 1024 + qq * 512} sc1")
    a("s_branch P1_SIGNAL")
    a.label("G1_REPACK")
    a("s_mov_b32 s77, 16")
    emit_voffw(a)
    a("v_lshlrev_b32 v7, 4, v1")
    a(f"s_sub_u32 s22, s2, {G1_TILES}")
    a("s_lshl_b32 s22, s22, 2")
    a("s_add_u32 s22, s22, s21")
    a("s_waitcnt lgkmcnt(0)")
    srd(a, 8, 68, W2_BYTES)
    srd(a, 12, 74, WS_BYTES)
    srd(a, 56, 74, WS_BYTES)
    a("s_nop 4")
    def hb_scalars(it, ssrc, sdst):
        a(f"s_add_u32 s23, s22, {128 * it}")
        a("s_lshr_b32 s24, s23, 1")
        a("s_mul_i32 s25, s24, 1214")
        a("s_lshr_b32 s25, s25, 15")
        a("s_mul_i32 s26, s25, 27")
        a("s_sub_u32 s26, s24, s26")
        a("s_and_b32 s27, s23, 1")
        a("s_lshl_b32 s26, s26, 1")
        a("s_add_u32 s26, s26, s27")
        a("s_mul_i32 s26, s26, 40960")
        a("s_mul_i32 s25, s25, 160")
        a(f"s_add_u32 s{ssrc}, s26, s25")
        a("s_mul_i32 s27, s23, 5120")
        a(f"s_add_u32 s{sdst}, s27, {W2P_OFF}")
        a(f"s_add_u32 s{sdst + 1}, s{sdst}, 4096")

    def hb_stores(it, last_wait):
        for j in range(5):
            a(f"s_waitcnt vmcnt({last_wait - j})")
            if j < 4:
                a(f"buffer_store_dwordx4 {vr(16 + it * 20 + j * 4, 4)}, v7, s[12:15], s{48 + it * 2} offen offset:{j * 1024}")
            else:
                a(f"buffer_store_dwordx4 {vr(16 + it * 20 + j * 4, 4)}, v7, s[12:15], s{49 + it * 2} offen")

    for it in range(3):
        hb_scalars(it, 40 + it, 48 + it * 2)
        for j in range(5):
            a(f"buffer_load_dwordx4 {vr(16 + it * 20 + j * 4, 4)}, v{2 + j}, s[8:11], s{40 + it} offen")
    a(f"s_cmp_ge_u32 s22, {432 - 384}")
    a("s_cbranch_scc1 G1_RP3")
    hb_scalars(3, 43, 54)
    for j in range(5):
        a(f"buffer_load_dwordx4 {vr(16 + 60 + j * 4, 4)}, v{2 + j}, s[8:11], s43 offen")
    for it in range(4):
        for j in range(5):
            a(f"s_waitcnt vmcnt({19})")
            if j < 4:
                a(f"buffer_store_dwordx4 {vr(16 + it * 20 + j * 4, 4)}, v7, s[12:15], s{48 + it * 2} offen offset:{j * 1024} sc1")
            else:
                a(f"buffer_store_dwordx4 {vr(16 + it * 20 + j * 4, 4)}, v7, s[12:15], s{49 + it * 2} offen sc1")
    a("s_branch P1_SIGNAL")
    a.label("G1_RP3")
    for it in range(3):
        for j in range(5):
            a(f"s_waitcnt vmcnt({14})")
            if j < 4:
                a(f"buffer_store_dwordx4 {vr(16 + it * 20 + j * 4, 4)}, v7, s[12:15], s{48 + it * 2} offen offset:{j * 1024} sc1")
            else:
                a(f"buffer_store_dwordx4 {vr(16 + it * 20 + j * 4, 4)}, v7, s[12:15], s{49 + it * 2} offen sc1")
    a.label("P1_SIGNAL")
    stamp(a, 3, 0, 76, 56)
    a("s_waitcnt vmcnt(0)")
    a("s_barrier")
    stamp(a, 4, 0, 76, 56)
    srd(a, 80, 72, 256)
    a("s_cmp_lg_u32 s76, 0")
    a("s_cbranch_scc1 P1_NOSIG")
    a("v_mov_b32 v12, 1")
    a("s_lshl_b32 s24, s77, 2")
    a("v_mov_b32 v13, s24")
    a("v_cmp_eq_u32 vcc, 0, v1")
    a("s_and_saveexec_b64 s[26:27], vcc")
    a("buffer_atomic_add v12, v13, s[80:83], 0 offen sc1")
    a("s_mov_b64 exec, s[26:27]")
    a.label("P1_NOSIG")


G2_WGS = 256
G2_LDS = 4 * 3 * 10240


def gen_gemm2(a):
    a("s_and_b32 s24, s2, 7")
    a("s_lshr_b32 s25, s2, 3")
    a("s_and_b32 s26, s24, 3")
    a("s_lshl_b32 s26, s26, 3")
    a("s_and_b32 s27, s25, 7")
    a("s_add_u32 s26, s26, s27")
    a("s_lshr_b32 s24, s24, 2")
    a("s_lshl_b32 s24, s24, 2")
    a("s_lshr_b32 s25, s25, 3")
    a("s_add_u32 s34, s24, s25")
    a("s_lshl_b32 s20, s26, 6")
    a("s_mul_i32 s21, s34, 80")
    a("s_mov_b32 s19, s76")
    a("s_lshr_b32 s35, s26, 1")
    a("v_lshlrev_b32 v2, 4, v1")
    a("s_lshr_b32 s24, s20, 4")
    a(f"s_mul_i32 s24, s24, {54 * 1024}")
    a("v_add_u32 v7, s24, v2")
    for f in range(1, 4):
        a(f"v_add_u32 v{7 + f}, {54 * 1024 * f}, v7")
    a("v_lshrrev_b32 v12, 5, v1")
    a("v_lshlrev_b32 v12, 4, v12")
    a("v_lshrrev_b32 v13, 4, v1")
    a("v_and_b32 v13, 1, v13")
    a("v_lshlrev_b32 v13, 2, v13")
    a("v_add_u32 v12, v12, v13")
    a("v_and_b32 v13, 15, v1")
    a("v_lshrrev_b32 v13, 2, v13")
    a("v_add_u32 v12, v12, v13")
    a("v_mul_u32_u24 v12, 160, v12")
    a("v_and_b32 v13, 3, v1")
    a("v_lshlrev_b32 v13, 3, v13")
    a("v_add_u32 v12, v12, v13")
    a("s_mul_i32 s18, s19, 30720")
    a("v_add_u32 v11, s18, v12")
    a("s_mul_i32 s17, s34, 27")
    a("s_add_u32 s17, s17, s19")
    a("s_mul_i32 s17, s17, 10240")
    a(f"s_add_u32 s17, s17, {W2P_OFF}")
    a("s_lshl_b32 s23, s19, 11")
    srd(a, 4, 74, H_BYTES)
    srd(a, 8, 74, WS_BYTES)
    srd(a, 12, 70, O_BYTES)
    a("s_nop 4")
    stamp(a, 0, 1, 19, 8)

    AFR = [16, 36]
    HB = 56
    ACC = 152

    a.reset_track()

    def w_ops(t):
        b = t % 3
        ops = []
        tag = ("st", t)
        for j in range(10):
            def f(j=j):
                a(f"s_add_u32 m0, s18, {b * 10240 + j * 1024}")
                a(f"s_add_u32 s16, s17, {t * 40960 + j * 1024}")
                a.vm(f"buffer_load_dwordx4 v2, s[8:11], s16 offen sc1 lds", tag)
            ops.append(f)
        return ops

    def h_ops(t):
        b = t % 3
        tag = ("st", t)
        hops = []
        for f_ in range(4):
            for kk in range(2):
                def g(f_=f_, kk=kk):
                    a(f"s_add_u32 s22, s23, {t * 8192}")
                    a.vm(f"buffer_load_dwordx4 {vr(HB + b * 32 + (f_ * 2 + kk) * 4, 4)}, v{7 + f_}, s[4:7], s22 offen offset:{kk * 1024} sc1", tag)
                hops.append(g)
        return hops

    def vm_ops(t):
        ops, hops = w_ops(t), h_ops(t)
        out = []
        while ops or hops:
            if ops:
                out.append(ops.pop(0))
            if hops:
                out.append(hops.pop(0))
        return out

    def poll(name, off_sgpr_or_imm, target):
        a(f"v_mov_b32 v13, {off_sgpr_or_imm}")
        a("s_mov_b32 s25, 0x400000")
        a.label(f"POLL_{name}")
        a("buffer_load_dword v12, v13, s[80:83], 0 offen sc1")
        a("s_waitcnt vmcnt(0)")
        a("v_readfirstlane_b32 s24, v12")
        a("s_nop 3")
        a(f"s_cmp_ge_u32 s24, {target}")
        a(f"s_cbranch_scc1 POLLD_{name}")
        a("s_sleep 1")
        a("s_sub_u32 s25, s25, 1")
        a("s_cmp_lg_u32 s25, 0")
        a(f"s_cbranch_scc1 POLL_{name}")
        a.label(f"POLLD_{name}")

    def rd_ops(t, kk):
        b = t % 3
        ops = []
        for ns in range(5):
            for second in range(2):
                ops.append(lambda ns=ns, second=second: a.ds(
                    f"ds_read_b64_tr_b16 {vr(AFR[kk] + ns * 4 + second * 2, 2)}, v11 offset:{b * 10240 + kk * 32 * 160 + second * 8 * 160 + ns * 32}", ("fr", t, kk)))
        return ops

    def half(t, kk, cnt):
        b = t % 3
        a.wait(ltag=("fr", t, kk))
        if kk == 1 and t + 1 < cnt:
            a.wait(vtag=("st", t + 1))
        mf = []
        for f_ in range(4):
            for ns in range(5):
                c = ACC + (f_ * 5 + ns) * 4
                src = "0" if (t == 0 and kk == 0) else vr(c, 4)
                mf.append(f"v_mfma_f32_16x16x32_bf16 {vr(c, 4)}, {vr(AFR[kk] + ns * 4, 4)}, {vr(HB + b * 32 + (f_ * 2 + kk) * 4, 4)}, {src}")
        if kk == 0:
            rd = rd_ops(t, 1)
        elif t + 1 < cnt:
            rd = rd_ops(t + 1, 0)
        else:
            rd = []
        vm = vm_ops(t + 2)[kk * 9:kk * 9 + 9] if t + 2 < cnt else []
        fill = []
        while rd or vm:
            if rd:
                fill.append(rd.pop(0))
            if vm:
                fill.append(vm.pop(0))
        interleave(a, mf, fill)

    poll("W", 64, 32)
    for f in w_ops(0) + w_ops(1):
        f()
    a("s_lshl_b32 s35, s35, 2")
    poll("H", "s35", 14)
    a.reset_track()
    stamp(a, 5, 1, 19, 8)
    for f in h_ops(0) + h_ops(1):
        f()
    a.wait(vtag=("st", 0))
    stamp(a, 1, 1, 19, 8)
    for f in rd_ops(0, 0):
        f()
    for t in range(4):
        half(t, 0, 7)
        half(t, 1, 7)
    a("s_cmp_eq_u32 s19, 3")
    a("s_cbranch_scc1 G2_SHORT")
    saved = (list(a.vq), list(a.lq))
    for t in range(4, 7):
        half(t, 0, 7)
        half(t, 1, 7)
    a("s_branch G2_RED")
    a.label("G2_SHORT")
    a.vq, a.lq = list(saved[0]), list(saved[1])
    for t in range(4, 6):
        half(t, 0, 6)
        half(t, 1, 6)
    a.label("G2_RED")
    stamp(a, 2, 1, 19, 8)
    a("v_lshlrev_b32 v12, 4, v1")
    a("s_mul_i32 s24, s19, 20480")
    a("v_add_u32 v13, s24, v12")
    a("s_mul_i32 s24, s19, 5120")
    a("v_add_u32 v14, s24, v12")
    a("v_add_u32 v15, 40960, v14")
    a("s_nop 7")
    a("s_barrier")
    for f in range(4):
        for ns in range(5):
            a(f"ds_write_b128 v13, {vr(ACC + (f * 5 + ns) * 4, 4)} offset:{(f * 5 + ns) * 1024}")
    a("s_waitcnt lgkmcnt(0)")
    a("s_barrier")
    R = 16
    for src in range(4):
        for ns in range(5):
            a(f"ds_read_b128 {vr(R + (src * 5 + ns) * 4, 4)}, v{14 + (src >> 1)} offset:{(src & 1) * 20480 + ns * 1024}")
    a("v_and_b32 v12, 15, v1")
    a("s_lshl_b32 s24, s19, 4")
    a("s_add_u32 s24, s24, s20")
    a("v_add_u32 v12, s24, v12")
    a("v_mul_u32_u24 v12, 0x500, v12")
    a("v_lshrrev_b32 v13, 4, v1")
    a("v_lshlrev_b32 v13, 3, v13")
    a("s_lshl_b32 s24, s21, 1")
    a("v_add_u32 v13, s24, v13")
    a("v_add_u32 v12, v12, v13")
    a("s_waitcnt lgkmcnt(0)")
    for ns in range(5):
        for r in range(2):
            d0 = R + ns * 4 + r * 2
            for src in range(1, 4):
                a(f"v_pk_add_f32 {vr(d0, 2)}, {vr(d0, 2)}, {vr(R + (src * 5 + ns) * 4 + r * 2, 2)}")
    for ns in range(5):
        d0 = R + ns * 4
        a(f"v_cvt_pk_bf16_f32 v{100 + ns * 2}, v{d0}, v{d0 + 1}")
        a(f"v_cvt_pk_bf16_f32 v{101 + ns * 2}, v{d0 + 2}, v{d0 + 3}")
    for ns in range(5):
        a(f"buffer_store_dwordx2 {vr(100 + ns * 2, 2)}, v12, s[12:15], 0 offen offset:{ns * 32}")
    stamp(a, 3, 1, 19, 8)
    a("s_waitcnt vmcnt(0)")
    stamp(a, 4, 1, 19, 8)
    a.label("K_END")
    a("s_endpgm")
    a.raw(kd(KNAME, 256 if STAMP else 232))


def main():
    for c in range(320):
        assert (c * 205) >> 11 == c // 10
    for b in range(216):
        assert (b * 1214) >> 15 == b // 27
    a = Asm()
    a.raw(HEADER.format(l1=G1_LDS).rstrip("\n"))
    gen_gemm1(a)
    gen_gemm2(a)
    open(OUT, "w").write(a.text())
    print("wrote", OUT, len(a.lines), "lines")


main()
```

```python
import os, sys
NO_VMEM = os.environ.get("NO_VMEM") == "1"
NO_MFMA = os.environ.get("NO_MFMA") == "1"
NO_EPI = os.environ.get("NO_EPI") == "1"
STAMP = os.environ.get("STAMP") == "1"
NO_ST = os.environ.get("NO_ST") == "1"
NO_SILU = os.environ.get("NO_SILU") == "1"

OUT = sys.argv[1] if len(sys.argv) > 1 else "standalone__dense_activation_silu__prompt.s"

M, D, F = 2048, 640, 1728
X_BYTES = M * D * 2
W1_BYTES = D * F * 2
W2_BYTES = F * D * 2
H_BYTES = M * F * 2
O_BYTES = M * D * 2
W2P_OFF = 8 << 20
WS_BYTES = (32 << 20) if os.environ.get("STAMP") == "1" else W2P_OFF + W2_BYTES


class Asm:
    def __init__(self):
        self.lines = []

    def __call__(self, s):
        self.lines.append("    " + s)

    def raw(self, s):
        self.lines.append(s)

    def label(self, s):
        self.lines.append(s + ":")

    def text(self):
        return "\n".join(self.lines) + "\n"

    def reset_track(self):
        self.vq = []
        self.lq = []

    def vm(self, s, tag):
        if NO_VMEM:
            return
        self(s)
        self.vq.append(tag)

    def ds(self, s, tag):
        self(s)
        self.lq.append(tag)

    def _n_after(self, q, tag):
        idx = [i for i, t in enumerate(q) if t == tag]
        if not idx:
            return None
        return len(q) - 1 - idx[-1]

    def wait(self, vtag=None, ltag=None):
        parts = []
        if vtag is not None:
            n = self._n_after(self.vq, vtag)
            if n is not None:
                assert n <= 63
                parts.append(f"vmcnt({n})")
                self.vq = self.vq[len(self.vq) - n:] if n else []
        if ltag is not None:
            n = self._n_after(self.lq, ltag)
            if n is not None:
                assert n <= 15, n
                parts.append(f"lgkmcnt({n})")
                self.lq = self.lq[len(self.lq) - n:] if n else []
        if parts:
            self("s_waitcnt " + " ".join(parts))


def interleave(a, mfmas, fillers):
    n = len(mfmas)
    k = len(fillers)
    j = 0
    for i, m in enumerate(mfmas):
        if not NO_MFMA:
            a(m)
        tgt = (i + 1) * k // n
        while j < tgt:
            fillers[j]()
            j += 1


def vr(a, n):
    return f"v[{a}:{a + n - 1}]"


HEADER = """; Kernarg layout for this problem (48 bytes, ptrs only, base s[0:1]):
; @launch grid=(256,1,1) block=(256,1,1) lds={l1}
.amdgcn_target "amdgcn-amd-amdhsa--gfx950"
"""
KNAME = "standalone__dense_activation_silu__prompt_kernel"


def kd(name, vgpr, sgpr=96):
    acc = (vgpr + 3) // 4 * 4
    return f""".section .rodata,"a"
.p2align 6
.amdhsa_kernel {name}
  .amdhsa_next_free_vgpr {vgpr}
  .amdhsa_next_free_sgpr {sgpr}
  .amdhsa_accum_offset {acc}
  .amdhsa_group_segment_fixed_size 0
  .amdhsa_kernarg_size 48
  .amdhsa_user_sgpr_count 2
  .amdhsa_user_sgpr_kernarg_segment_ptr 1
  .amdhsa_system_sgpr_workgroup_id_x 1
.end_amdhsa_kernel
"""


def stamp(a, idx, kern, wave_s, srd_s, real=False):
    if not STAMP:
        return
    if idx in (0, 4) and not real:
        stamp(a, idx + 8, kern, wave_s, srd_s, True)
    a("s_memrealtime s[60:61]" if real else "s_memtime s[60:61]")
    a("s_waitcnt lgkmcnt(0)")
    a(f"s_cmp_lg_u32 s{wave_s}, 0")
    a(f"s_cbranch_scc1 STAMP_SKIP_{kern}_{idx}")
    a("v_mov_b32 v250, s60")
    a("v_mov_b32 v251, s61")
    a(f"s_lshl_b32 s62, s2, 7")
    a(f"s_add_u32 s62, s62, {(16 << 20) + kern * 65536 + idx * 8}")
    a("v_mov_b32 v252, 0")
    a(f"buffer_store_dwordx2 v[250:251], v252, s[{srd_s}:{srd_s + 3}], s62 offen")
    a.label(f"STAMP_SKIP_{kern}_{idx}")


def srd(a, sd, sp, nbytes):
    a(f"s_mov_b32 s{sd}, s{sp}")
    a(f"s_and_b32 s{sd + 1}, s{sp + 1}, 0xffff")
    a(f"s_mov_b32 s{sd + 2}, {nbytes}")
    a(f"s_mov_b32 s{sd + 3}, 0x00020000")


def emit_voffw(a):
    for j in range(5):
        a(f"v_add_u32 v12, {64 * j}, v1")
        a("v_mul_u32_u24 v13, 205, v12")
        a("v_lshrrev_b32 v13, 11, v13")
        a("v_mul_u32_u24 v14, 10, v13")
        a("v_sub_u32 v14, v12, v14")
        a("v_and_b32 v15, 0x33, v13")
        a("v_and_b32 v12, 4, v13")
        a("v_lshlrev_b32 v12, 1, v12")
        a("v_or_b32 v15, v15, v12")
        a("v_and_b32 v12, 8, v13")
        a("v_lshrrev_b32 v12, 1, v12")
        a("v_or_b32 v15, v15, v12")
        a("v_mul_u32_u24 v15, 0x500, v15")
        a("v_lshlrev_b32 v14, 4, v14")
        a(f"v_add_u32 v{2 + j}, v15, v14")


G1_TILES = 16 * 14
G1_WGS = 256
G1_LDS = 4 * 32768


def gen_gemm1(a):
    KS = D // 64
    a.raw(".text")
    a.raw(f".globl {KNAME}")
    a.raw(".p2align 8")
    a.raw(f".type {KNAME},@function")
    a.label(KNAME)
    a(f"s_cmp_ge_u32 s2, {G1_WGS}")
    a("s_cbranch_scc1 K_END")
    a("s_load_dwordx8 s[64:71], s[0:1], 0")
    a("s_load_dwordx4 s[72:75], s[0:1], 32")
    a("v_lshrrev_b32 v1, 6, v0")
    a("v_and_b32 v17, 63, v0")
    a("v_readfirstlane_b32 s76, v1")
    a("v_mov_b32 v1, v17")
    a("s_nop 3")
    a("s_mov_b32 s21, s76")
    a(f"s_cmp_ge_u32 s2, {G1_TILES}")
    a("s_cbranch_scc1 G1_REPACK")
    a("s_and_b32 s24, s2, 7")
    a("s_lshr_b32 s25, s2, 3")
    a("s_and_b32 s26, s24, 3")
    a("s_lshl_b32 s26, s26, 2")
    a("s_and_b32 s27, s25, 3")
    a("s_add_u32 s26, s26, s27")
    a("s_lshr_b32 s24, s24, 2")
    a("s_mul_i32 s24, s24, 7")
    a("s_lshr_b32 s25, s25, 2")
    a("s_add_u32 s24, s24, s25")
    a("s_lshl_b32 s22, s26, 7")
    a("s_lshl_b32 s23, s24, 7")
    a("s_lshl_b32 s77, s26, 4")
    a("s_add_u32 s77, s77, s24")
    a("v_lshrrev_b32 v18, 3, v1")
    a("v_mul_u32_u24 v18, 0x500, v18")
    a("v_and_b32 v19, 7, v1")
    a("v_lshrrev_b32 v20, 4, v1")
    a("v_xor_b32 v21, v19, v20")
    a("v_lshlrev_b32 v21, 4, v21")
    a("v_add_u32 v2, v18, v21")
    a("v_xor_b32 v21, 4, v21" if False else "v_xor_b32 v21, v19, v20")
    a("v_xor_b32 v21, 4, v21")
    a("v_lshlrev_b32 v21, 4, v21")
    a("v_add_u32 v3, v18, v21")
    a("v_mul_u32_u24 v18, 0xd80, v20")
    a("v_and_b32 v19, 15, v1")
    a("v_lshlrev_b32 v21, 2, v20")
    a("v_xor_b32 v19, v19, v21")
    a("v_lshlrev_b32 v19, 4, v19")
    a("v_add_u32 v4, v18, v19")
    a("s_and_b32 s34, s21, 1")
    a("s_lshr_b32 s35, s21, 1")
    a("s_lshl_b32 s24, s21, 5")
    a("s_add_u32 s24, s24, s22")
    a("s_mul_i32 s17, s24, 1280")
    a("s_mul_i32 s18, s21, %d" % (16 * 3456))
    a("s_lshl_b32 s24, s23, 1")
    a("s_add_u32 s18, s18, s24")
    a("s_lshl_b32 s19, s21, 12")
    a("s_add_u32 s20, s19, 16384")
    a("v_and_b32 v18, 31, v1")
    a("s_lshl_b32 s24, s34, 6")
    a("v_add_u32 v18, s24, v18")
    a("v_lshrrev_b32 v19, 1, v18")
    a("v_and_b32 v19, 7, v19")
    a("v_lshrrev_b32 v20, 5, v1")
    a("v_xor_b32 v19, v19, v20")
    a("v_lshlrev_b32 v18, 7, v18")
    for kk in range(4):
        a(f"v_xor_b32 v20, {2 * kk}, v19")
        a("v_lshlrev_b32 v20, 4, v20")
        a(f"v_add_u32 v{5 + kk}, v18, v20")
        a(f"v_add_u32 v{9 + kk}, 0x10000, v{5 + kk}")
    a("v_lshrrev_b32 v18, 5, v1")
    a("v_lshlrev_b32 v18, 3, v18")
    a("v_and_b32 v19, 15, v1")
    a("v_lshrrev_b32 v19, 2, v19")
    a("v_add_u32 v18, v18, v19")
    a("v_lshlrev_b32 v18, 8, v18")
    a("v_and_b32 v20, 1, v1")
    a("v_lshlrev_b32 v20, 3, v20")
    a("v_add_u32 v18, v18, v20")
    a("v_add_u32 v18, 0x4000, v18")
    a("v_lshrrev_b32 v20, 4, v1")
    a("v_and_b32 v20, 1, v20")
    a("v_lshlrev_b32 v20, 1, v20")
    a("v_and_b32 v21, 3, v1")
    a("v_lshrrev_b32 v21, 1, v21")
    a("v_add_u32 v20, v20, v21")
    a("s_lshl_b32 s24, s35, 3")
    a("v_add_u32 v20, s24, v20")
    a("v_lshlrev_b32 v19, 2, v19")
    for sn in range(2):
        a(f"v_add_u32 v21, {4 * sn}, v20")
        a("v_xor_b32 v21, v21, v19")
        a("v_lshlrev_b32 v21, 4, v21")
        a(f"v_add_u32 v{13 + sn}, v18, v21")
        a(f"v_add_u32 v{15 + sn}, 0x10000, v{13 + sn}")
    a("s_waitcnt lgkmcnt(0)")
    srd(a, 4, 64, X_BYTES)
    srd(a, 8, 66, W1_BYTES)
    srd(a, 12, 74, H_BYTES)
    srd(a, 56, 74, WS_BYTES)
    a("s_nop 4")
    stamp(a, 0, 0, 21, 56)

    a.reset_track()

    def dma(stage, j):
        buf = stage % 4
        jj = j & 3

        def f():
            if j < 4:
                a(f"s_add_u32 m0, s19, {buf * 32768 + jj * 1024}")
                a(f"s_add_u32 s16, s17, {8 * jj * 1280 + stage * 128}")
                a.vm(f"buffer_load_dwordx4 v{2 + (jj & 1)}, s[4:7], s16 offen lds", ("st", stage))
            else:
                a(f"s_add_u32 m0, s20, {buf * 32768 + jj * 1024}")
                a(f"s_add_u32 s16, s18, {(stage * 64 + 4 * jj) * 3456}")
                a.vm("buffer_load_dwordx4 v4, s[8:11], s16 offen lds", ("st", stage))
        return f

    AF = [32, 40]
    BF = [48, 56]
    ACC = 64

    def read_ops(stage, kk, st):
        buf = stage % 4
        hi = buf >= 2
        boff = (buf & 1) * 32768
        ops = []
        tag = ("fr", stage, kk)
        for sm in range(2):
            br = (9 if hi else 5) + kk
            ops.append(lambda br=br, sm=sm: a.ds(f"ds_read_b128 {vr(BF[st] + sm * 4, 4)}, v{br} offset:{boff + sm * 4096}", tag))
            sn = sm
            ar = (15 if hi else 13) + sn
            for second in range(2):
                ops.append(lambda ar=ar, sn=sn, second=second: a.ds(
                    f"ds_read_b64_tr_b16 {vr(AF[st] + sn * 4 + second * 2, 2)}, v{ar} offset:{boff + kk * 4096 + second * 1024}", tag))
        return ops

    def dma_for(i, kk):
        if kk == 3:
            s_, p = i + 4, 0
        else:
            s_, p = i + 3, kk + 1
        if s_ >= KS:
            return []
        return [dma(s_, p), dma(s_, 4 + p)]

    for s_ in range(3):
        for j in (0, 4, 1, 5, 2, 6, 3, 7):
            dma(s_, j)()
    for f in dma_for(-1, 3):
        f()
    a.wait(vtag=("st", 0))
    a("s_barrier")
    if STAMP:
        a("s_waitcnt vmcnt(0)")
        a.vq = []
    stamp(a, 1, 0, 21, 56)
    for f in read_ops(0, 0, 0):
        f()
    for i in range(KS):
        for kk in range(4):
            st = kk & 1
            a.wait(ltag=("fr", i, kk))
            if kk == 3 and i + 1 < KS:
                a.wait(vtag=("st", i + 1))
                a("s_barrier")
            mf = []
            for sn in range(2):
                for sm in range(2):
                    c = ACC + (sn * 2 + sm) * 16
                    src = "0" if (i == 0 and kk == 0) else vr(c, 16)
                    mf.append(f"v_mfma_f32_32x32x16_bf16 {vr(c, 16)}, {vr(AF[st] + sn * 4, 4)}, {vr(BF[st] + sm * 4, 4)}, {src}")
            if kk < 3:
                rd = read_ops(i, kk + 1, st ^ 1)
            elif i + 1 < KS:
                rd = read_ops(i + 1, 0, st ^ 1)
            else:
                rd = []
            dm = dma_for(i, kk)
            fill = []
            if rd:
                fill = [rd[0], rd[1], rd[2]] + dm[:1] + [rd[3], rd[4], rd[5]] + dm[1:]
            else:
                fill = dm
            interleave(a, mf, fill)
    stamp(a, 2, 0, 21, 56)
    if NO_EPI:
        a("s_branch P1_SIGNAL")
    a("s_lshl_b32 s24, s35, 6")
    a("s_add_u32 s24, s24, s23")
    a(f"s_cmp_ge_u32 s24, {F}")
    a("s_cbranch_scc1 P1_SIGNAL")
    a("v_lshrrev_b32 v18, 4, v1")
    a("v_and_b32 v18, 1, v18")
    a("s_lshl_b32 s24, s34, 2")
    a("v_add_u32 v18, s24, v18")
    a(f"v_mul_u32_u24 v18, {54 * 1024}, v18")
    a("v_lshrrev_b32 v19, 5, v1")
    a("v_lshlrev_b32 v19, 4, v19")
    a("v_and_b32 v20, 15, v1")
    a("v_add_u32 v19, v19, v20")
    a("v_lshlrev_b32 v19, 4, v19")
    a("v_add_u32 v2, v18, v19")
    a(f"v_add_u32 v3, {2 * 54 * 1024}, v2")
    a("s_lshr_b32 s16, s22, 4")
    a("s_mul_i32 s16, s16, 54")
    a("s_lshl_b32 s24, s35, 6")
    a("s_add_u32 s24, s24, s23")
    a("s_lshr_b32 s24, s24, 5")
    a("s_add_u32 s16, s16, s24")
    a("s_lshl_b32 s16, s16, 10")
    a("s_mov_b32 s36, 0xbfb8aa3b")
    a("s_mov_b32 s37, 0xbfb8aa3b")
    a("s_mov_b32 s38, 0xffff0000")
    a("s_nop 15")
    for sn in range(2):
        for sm in range(2):
            c = ACC + (sn * 2 + sm) * 16
            for qq in range(2):
                X = 32
                E = 40
                P = 48
                for j in range(4):
                    a(f"v_cvt_pk_bf16_f32 v{P + j}, v{c + qq * 8 + 2 * j}, v{c + qq * 8 + 2 * j + 1}")
                for j in range(4):
                    a(f"v_lshlrev_b32 v{X + 2 * j}, 16, v{P + j}")
                    a(f"v_and_b32 v{X + 2 * j + 1}, s38, v{P + j}")
                for j in range(4):
                    a(f"v_pk_mul_f32 {vr(E + 2 * j, 2)}, {vr(X + 2 * j, 2)}, s[36:37]")
                for j in range(8):
                    if not NO_SILU:
                        a(f"v_exp_f32 v{E + j}, v{E + j}")
                for j in range(4):
                    a(f"v_pk_add_f32 {vr(E + 2 * j, 2)}, {vr(E + 2 * j, 2)}, 1.0 op_sel_hi:[1,0]")
                for j in range(8):
                    if not NO_SILU:
                        a(f"v_rcp_f32 v{E + j}, v{E + j}")
                for j in range(4):
                    a(f"v_pk_mul_f32 {vr(X + 2 * j, 2)}, {vr(X + 2 * j, 2)}, {vr(E + 2 * j, 2)}")
                O = 52 + (qq * 4)
                for j in range(4):
                    a(f"v_cvt_pk_bf16_f32 v{O + j}, v{X + 2 * j}, v{X + 2 * j + 1}")
                a("s_nop 1")
                a(f"v_permlane32_swap_b32 v{O}, v{O + 2}")
                a(f"v_permlane32_swap_b32 v{O + 1}, v{O + 3}")
                if not NO_ST:
                    a(f"buffer_store_dwordx4 {vr(O, 4)}, v{2 + sm}, s[12:15], s16 offen offset:{sn * 1024 + qq * 512} sc1")
    a("s_branch P1_SIGNAL")
    a.label("G1_REPACK")
    a(f"s_sub_u32 s77, s2, {G1_TILES}")
    a("s_lshr_b32 s24, s77, 1")
    a("s_lshl_b32 s24, s24, 4")
    a("s_and_b32 s77, s77, 1")
    a("s_add_u32 s77, s77, s24")
    a("s_add_u32 s77, s77, 14")
    emit_voffw(a)
    a("v_lshlrev_b32 v7, 4, v1")
    a(f"s_sub_u32 s22, s2, {G1_TILES}")
    a("s_lshl_b32 s22, s22, 2")
    a("s_add_u32 s22, s22, s21")
    a("s_waitcnt lgkmcnt(0)")
    srd(a, 8, 68, W2_BYTES)
    srd(a, 12, 74, WS_BYTES)
    srd(a, 56, 74, WS_BYTES)
    a("s_nop 4")
    stamp(a, 7, 0, 21, 56)
    def hb_scalars(it, ssrc, sdst):
        a(f"s_add_u32 s23, s22, {128 * it}")
        a("s_lshr_b32 s24, s23, 1")
        a("s_mul_i32 s25, s24, 1214")
        a("s_lshr_b32 s25, s25, 15")
        a("s_mul_i32 s26, s25, 27")
        a("s_sub_u32 s26, s24, s26")
        a("s_and_b32 s27, s23, 1")
        a("s_lshl_b32 s26, s26, 1")
        a("s_add_u32 s26, s26, s27")
        a("s_mul_i32 s26, s26, 40960")
        a("s_mul_i32 s25, s25, 160")
        a(f"s_add_u32 s{ssrc}, s26, s25")
        a("s_mul_i32 s27, s23, 5120")
        a(f"s_add_u32 s{sdst}, s27, {W2P_OFF}")
        a(f"s_add_u32 s{sdst + 1}, s{sdst}, 4096")

    def hb_stores(it, last_wait):
        for j in range(5):
            a(f"s_waitcnt vmcnt({last_wait - j})")
            if j < 4:
                a(f"buffer_store_dwordx4 {vr(16 + it * 20 + j * 4, 4)}, v7, s[12:15], s{48 + it * 2} offen offset:{j * 1024}")
            else:
                a(f"buffer_store_dwordx4 {vr(16 + it * 20 + j * 4, 4)}, v7, s[12:15], s{49 + it * 2} offen")

    for it in range(3):
        hb_scalars(it, 40 + it, 48 + it * 2)
        for j in range(5):
            a(f"buffer_load_dwordx4 {vr(16 + it * 20 + j * 4, 4)}, v{2 + j}, s[8:11], s{40 + it} offen")
    a(f"s_cmp_ge_u32 s22, {432 - 384}")
    a("s_cbranch_scc1 G1_RP3")
    hb_scalars(3, 43, 54)
    for j in range(5):
        a(f"buffer_load_dwordx4 {vr(16 + 60 + j * 4, 4)}, v{2 + j}, s[8:11], s43 offen")
    for it in range(4):
        for j in range(5):
            a(f"s_waitcnt vmcnt({19})")
            if j < 4:
                a(f"buffer_store_dwordx4 {vr(16 + it * 20 + j * 4, 4)}, v7, s[12:15], s{48 + it * 2} offen offset:{j * 1024} sc1")
            else:
                a(f"buffer_store_dwordx4 {vr(16 + it * 20 + j * 4, 4)}, v7, s[12:15], s{49 + it * 2} offen sc1")
    a("s_branch P1_SIGNAL")
    a.label("G1_RP3")
    for it in range(3):
        for j in range(5):
            a(f"s_waitcnt vmcnt({14})")
            if j < 4:
                a(f"buffer_store_dwordx4 {vr(16 + it * 20 + j * 4, 4)}, v7, s[12:15], s{48 + it * 2} offen offset:{j * 1024} sc1")
            else:
                a(f"buffer_store_dwordx4 {vr(16 + it * 20 + j * 4, 4)}, v7, s[12:15], s{49 + it * 2} offen sc1")
    a.label("P1_SIGNAL")
    stamp(a, 3, 0, 76, 56)
    a("s_waitcnt vmcnt(0)")
    a("s_barrier")
    stamp(a, 4, 0, 76, 56)
    srd(a, 80, 72, 256)
    a("s_cmp_lg_u32 s76, 0")
    a("s_cbranch_scc1 P1_NOSIG")
    a("v_mov_b32 v12, 1")
    a("v_mov_b32 v13, s77")
    a("v_cmp_eq_u32 vcc, 0, v1")
    a("s_and_saveexec_b64 s[26:27], vcc")
    a("buffer_store_byte v12, v13, s[80:83], 0 offen sc1")
    a("s_mov_b64 exec, s[26:27]")
    a.label("P1_NOSIG")


G2_WGS = 256
G2_LDS = 4 * 3 * 10240


def gen_gemm2(a):
    a("s_and_b32 s24, s2, 7")
    a("s_lshr_b32 s25, s2, 3")
    a("s_and_b32 s26, s24, 3")
    a("s_lshl_b32 s26, s26, 3")
    a("s_and_b32 s27, s25, 7")
    a("s_add_u32 s26, s26, s27")
    a("s_lshr_b32 s24, s24, 2")
    a("s_lshl_b32 s24, s24, 2")
    a("s_lshr_b32 s25, s25, 3")
    a("s_add_u32 s34, s24, s25")
    a("s_lshl_b32 s20, s26, 6")
    a("s_mul_i32 s21, s34, 80")
    a("s_mov_b32 s19, s76")
    a("s_lshr_b32 s35, s26, 1")
    a("v_lshlrev_b32 v2, 4, v1")
    a("s_lshr_b32 s24, s20, 4")
    a(f"s_mul_i32 s24, s24, {54 * 1024}")
    a("v_add_u32 v7, s24, v2")
    for f in range(1, 4):
        a(f"v_add_u32 v{7 + f}, {54 * 1024 * f}, v7")
    a("v_lshrrev_b32 v12, 5, v1")
    a("v_lshlrev_b32 v12, 4, v12")
    a("v_lshrrev_b32 v13, 4, v1")
    a("v_and_b32 v13, 1, v13")
    a("v_lshlrev_b32 v13, 2, v13")
    a("v_add_u32 v12, v12, v13")
    a("v_and_b32 v13, 15, v1")
    a("v_lshrrev_b32 v13, 2, v13")
    a("v_add_u32 v12, v12, v13")
    a("v_mul_u32_u24 v12, 160, v12")
    a("v_and_b32 v13, 3, v1")
    a("v_lshlrev_b32 v13, 3, v13")
    a("v_add_u32 v12, v12, v13")
    a("s_mul_i32 s18, s19, 30720")
    a("v_add_u32 v11, s18, v12")
    a("s_mul_i32 s17, s34, 27")
    a("s_add_u32 s17, s17, s19")
    a("s_mul_i32 s17, s17, 10240")
    a(f"s_add_u32 s17, s17, {W2P_OFF}")
    a("s_lshl_b32 s23, s19, 11")
    srd(a, 4, 74, H_BYTES)
    srd(a, 8, 74, WS_BYTES)
    srd(a, 12, 70, O_BYTES)
    a("s_nop 4")
    stamp(a, 0, 1, 19, 8)

    AFR = [16, 36]
    HB = 56
    ACC = 152

    a.reset_track()

    def w_ops(t):
        b = t % 3
        ops = []
        tag = ("st", t)
        for j in range(10):
            def f(j=j):
                a(f"s_add_u32 m0, s18, {b * 10240 + j * 1024}")
                a(f"s_add_u32 s16, s17, {t * 40960 + j * 1024}")
                a.vm(f"buffer_load_dwordx4 v2, s[8:11], s16 offen sc1 lds", tag)
            ops.append(f)
        return ops

    def h_ops(t):
        b = t % 3
        tag = ("st", t)
        hops = []
        for f_ in range(4):
            for kk in range(2):
                def g(f_=f_, kk=kk):
                    a(f"s_add_u32 s22, s23, {t * 8192}")
                    a.vm(f"buffer_load_dwordx4 {vr(HB + b * 32 + (f_ * 2 + kk) * 4, 4)}, v{7 + f_}, s[4:7], s22 offen offset:{kk * 1024} sc1", tag)
                hops.append(g)
        return hops

    def vm_ops(t):
        ops, hops = w_ops(t), h_ops(t)
        out = []
        while ops or hops:
            if ops:
                out.append(ops.pop(0))
            if hops:
                out.append(hops.pop(0))
        return out

    def poll():
        a("v_and_b32 v13, 15, v1")
        a("v_lshlrev_b32 v13, 4, v13")
        a("v_and_b32 v14, 15, v1")
        a("v_cmp_eq_u32 vcc, s35, v14")
        a("v_mov_b32 v14, 0x01010101")
        a("v_mov_b32 v15, 0x01010000")
        a("s_nop 1")
        a("v_cndmask_b32 v16, 0, v14, vcc")
        a("v_cndmask_b32 v17, v15, v14, vcc")
        a("s_mov_b32 s25, 0x100000")
        a.label("POLL")
        a("buffer_load_dwordx4 v[20:23], v13, s[80:83], 0 offen sc1")
        a("s_waitcnt vmcnt(0)")
        a("v_and_b32 v20, v20, v16")
        a("v_and_b32 v21, v21, v16")
        a("v_and_b32 v22, v22, v16")
        a("v_and_b32 v23, v23, v17")
        a("v_xor_b32 v20, v20, v16")
        a("v_xor_b32 v21, v21, v16")
        a("v_xor_b32 v22, v22, v16")
        a("v_xor_b32 v23, v23, v17")
        a("v_or_b32 v20, v20, v21")
        a("v_or_b32 v22, v22, v23")
        a("v_or_b32 v20, v20, v22")
        a("v_cmp_ne_u32 vcc, 0, v20")
        a("s_nop 4")
        a("s_cbranch_vccz POLLD")
        a(f"s_sleep {os.environ.get('SLEEP', '2')}")
        a("s_sub_u32 s25, s25, 1")
        a("s_cmp_lg_u32 s25, 0")
        a("s_cbranch_scc1 POLL")
        a.label("POLLD")

    def rd_ops(t, kk):
        b = t % 3
        ops = []
        for ns in range(5):
            for second in range(2):
                ops.append(lambda ns=ns, second=second: a.ds(
                    f"ds_read_b64_tr_b16 {vr(AFR[kk] + ns * 4 + second * 2, 2)}, v11 offset:{b * 10240 + kk * 32 * 160 + second * 8 * 160 + ns * 32}", ("fr", t, kk)))
        return ops

    def half(t, kk, cnt):
        b = t % 3
        a.wait(ltag=("fr", t, kk))
        if kk == 1 and t + 1 < cnt:
            a.wait(vtag=("st", t + 1))
        mf = []
        for f_ in range(4):
            for ns in range(5):
                c = ACC + (f_ * 5 + ns) * 4
                src = "0" if (t == 0 and kk == 0) else vr(c, 4)
                mf.append(f"v_mfma_f32_16x16x32_bf16 {vr(c, 4)}, {vr(AFR[kk] + ns * 4, 4)}, {vr(HB + b * 32 + (f_ * 2 + kk) * 4, 4)}, {src}")
        if kk == 0:
            rd = rd_ops(t, 1)
        elif t + 1 < cnt:
            rd = rd_ops(t + 1, 0)
        else:
            rd = []
        vm = vm_ops(t + 2)[kk * 9:kk * 9 + 9] if t + 2 < cnt else []
        fill = []
        while rd or vm:
            if rd:
                fill.append(rd.pop(0))
            if vm:
                fill.append(vm.pop(0))
        interleave(a, mf, fill)

    a("s_cmp_lg_u32 s19, 0")
    a("s_cbranch_scc1 POLL_SKIP")
    poll()
    a.label("POLL_SKIP")
    a("s_barrier")
    a.reset_track()
    stamp(a, 5, 1, 19, 8)
    for f in vm_ops(0) + vm_ops(1):
        f()
    a.wait(vtag=("st", 0))
    stamp(a, 1, 1, 19, 8)
    for f in rd_ops(0, 0):
        f()
    for t in range(4):
        half(t, 0, 7)
        half(t, 1, 7)
    a("s_cmp_eq_u32 s19, 3")
    a("s_cbranch_scc1 G2_SHORT")
    saved = (list(a.vq), list(a.lq))
    for t in range(4, 7):
        half(t, 0, 7)
        half(t, 1, 7)
    a("s_branch G2_RED")
    a.label("G2_SHORT")
    a.vq, a.lq = list(saved[0]), list(saved[1])
    for t in range(4, 6):
        half(t, 0, 6)
        half(t, 1, 6)
    a.label("G2_RED")
    stamp(a, 2, 1, 19, 8)
    a("v_lshlrev_b32 v12, 4, v1")
    a("s_mul_i32 s24, s19, 20480")
    a("v_add_u32 v13, s24, v12")
    a("s_mul_i32 s24, s19, 5120")
    a("v_add_u32 v14, s24, v12")
    a("v_add_u32 v15, 40960, v14")
    a("s_nop 7")
    a("s_barrier")
    for f in range(4):
        for ns in range(5):
            a(f"ds_write_b128 v13, {vr(ACC + (f * 5 + ns) * 4, 4)} offset:{(f * 5 + ns) * 1024}")
    a("s_waitcnt lgkmcnt(0)")
    a("s_barrier")
    R = 16
    for src in range(4):
        for ns in range(5):
            a(f"ds_read_b128 {vr(R + (src * 5 + ns) * 4, 4)}, v{14 + (src >> 1)} offset:{(src & 1) * 20480 + ns * 1024}")
    a("v_and_b32 v12, 15, v1")
    a("s_lshl_b32 s24, s19, 4")
    a("s_add_u32 s24, s24, s20")
    a("v_add_u32 v12, s24, v12")
    a("v_mul_u32_u24 v12, 0x500, v12")
    a("v_lshrrev_b32 v13, 4, v1")
    a("v_lshlrev_b32 v13, 3, v13")
    a("s_lshl_b32 s24, s21, 1")
    a("v_add_u32 v13, s24, v13")
    a("v_add_u32 v12, v12, v13")
    a("s_waitcnt lgkmcnt(0)")
    for ns in range(5):
        for r in range(2):
            d0 = R + ns * 4 + r * 2
            for src in range(1, 4):
                a(f"v_pk_add_f32 {vr(d0, 2)}, {vr(d0, 2)}, {vr(R + (src * 5 + ns) * 4 + r * 2, 2)}")
    for ns in range(5):
        d0 = R + ns * 4
        a(f"v_cvt_pk_bf16_f32 v{100 + ns * 2}, v{d0}, v{d0 + 1}")
        a(f"v_cvt_pk_bf16_f32 v{101 + ns * 2}, v{d0 + 2}, v{d0 + 3}")
    for ns in range(5):
        a(f"buffer_store_dwordx2 {vr(100 + ns * 2, 2)}, v12, s[12:15], 0 offen offset:{ns * 32}")
    stamp(a, 3, 1, 19, 8)
    a("s_waitcnt vmcnt(0)")
    stamp(a, 4, 1, 19, 8)
    a.label("K_END")
    a("s_endpgm")
    a.raw(kd(KNAME, 256 if STAMP else 232))


def main():
    for c in range(320):
        assert (c * 205) >> 11 == c // 10
    for b in range(216):
        assert (b * 1214) >> 15 == b // 27
    a = Asm()
    a.raw(HEADER.format(l1=G1_LDS).rstrip("\n"))
    gen_gemm1(a)
    gen_gemm2(a)
    open(OUT, "w").write(a.text())
    print("wrote", OUT, len(a.lines), "lines")


main()
```

```python
import os, sys
NO_VMEM = os.environ.get("NO_VMEM") == "1"
NO_MFMA = os.environ.get("NO_MFMA") == "1"
NO_EPI = os.environ.get("NO_EPI") == "1"
TOUCH = os.environ.get("TOUCH", "0") == "1"
STF = os.environ.get("ST_FLAG", "")
STAMP = os.environ.get("STAMP") == "1"
NO_ST = os.environ.get("NO_ST") == "1"
NO_SILU = os.environ.get("NO_SILU") == "1"

OUT = sys.argv[1] if len(sys.argv) > 1 else "standalone__dense_activation_silu__prompt.s"

M, D, F = 2048, 640, 1728
X_BYTES = M * D * 2
W1_BYTES = D * F * 2
W2_BYTES = F * D * 2
H_BYTES = M * F * 2
O_BYTES = M * D * 2
W2P_OFF = 8 << 20
WS_BYTES = (32 << 20) if os.environ.get("STAMP") == "1" else W2P_OFF + W2_BYTES


class Asm:
    def __init__(self):
        self.lines = []

    def __call__(self, s):
        self.lines.append("    " + s)

    def raw(self, s):
        self.lines.append(s)

    def label(self, s):
        self.lines.append(s + ":")

    def text(self):
        return "\n".join(self.lines) + "\n"

    def reset_track(self):
        self.vq = []
        self.lq = []

    def vm(self, s, tag):
        if NO_VMEM:
            return
        self(s)
        self.vq.append(tag)

    def ds(self, s, tag):
        self(s)
        self.lq.append(tag)

    def _n_after(self, q, tag):
        idx = [i for i, t in enumerate(q) if t == tag]
        if not idx:
            return None
        return len(q) - 1 - idx[-1]

    def wait(self, vtag=None, ltag=None):
        parts = []
        if vtag is not None:
            n = self._n_after(self.vq, vtag)
            if n is not None:
                assert n <= 63
                parts.append(f"vmcnt({n})")
                self.vq = self.vq[len(self.vq) - n:] if n else []
        if ltag is not None:
            n = self._n_after(self.lq, ltag)
            if n is not None:
                assert n <= 15, n
                parts.append(f"lgkmcnt({n})")
                self.lq = self.lq[len(self.lq) - n:] if n else []
        if parts:
            self("s_waitcnt " + " ".join(parts))


def interleave(a, mfmas, fillers):
    n = len(mfmas)
    k = len(fillers)
    j = 0
    for i, m in enumerate(mfmas):
        if not NO_MFMA:
            a(m)
        tgt = (i + 1) * k // n
        while j < tgt:
            fillers[j]()
            j += 1


def vr(a, n):
    return f"v[{a}:{a + n - 1}]"


HEADER = """; Kernarg layout for this problem (48 bytes, ptrs only, base s[0:1]):
; @launch kernel=gemm1_kernel grid=({g1},1,1) block=(256,1,1) lds={l1}
; @launch kernel=gemm2_kernel grid=({g2},1,1) block=(256,1,1) lds={l2}
.amdgcn_target "amdgcn-amd-amdhsa--gfx950"
"""


def kd(name, vgpr, sgpr=64):
    acc = (vgpr + 3) // 4 * 4
    return f""".section .rodata,"a"
.p2align 6
.amdhsa_kernel {name}
  .amdhsa_next_free_vgpr {vgpr}
  .amdhsa_next_free_sgpr {sgpr}
  .amdhsa_accum_offset {acc}
  .amdhsa_group_segment_fixed_size 0
  .amdhsa_kernarg_size 48
  .amdhsa_user_sgpr_count 2
  .amdhsa_user_sgpr_kernarg_segment_ptr 1
  .amdhsa_system_sgpr_workgroup_id_x 1
.end_amdhsa_kernel
"""


def stamp(a, idx, kern, wave_s, srd_s, real=False):
    if not STAMP:
        return
    if idx in (0, 4) and not real:
        stamp(a, idx + 8, kern, wave_s, srd_s, True)
    a("s_memrealtime s[60:61]" if real else "s_memtime s[60:61]")
    a("s_waitcnt lgkmcnt(0)")
    a(f"s_cmp_lg_u32 s{wave_s}, 0")
    a(f"s_cbranch_scc1 STAMP_SKIP_{kern}_{idx}")
    a("v_mov_b32 v250, s60")
    a("v_mov_b32 v251, s61")
    a(f"s_lshl_b32 s62, s2, 7")
    a(f"s_add_u32 s62, s62, {(16 << 20) + kern * 65536 + idx * 8}")
    a("v_mov_b32 v252, 0")
    a(f"buffer_store_dwordx2 v[250:251], v252, s[{srd_s}:{srd_s + 3}], s62 offen")
    a.label(f"STAMP_SKIP_{kern}_{idx}")


def srd(a, sd, sp, nbytes):
    a(f"s_mov_b32 s{sd}, s{sp}")
    a(f"s_and_b32 s{sd + 1}, s{sp + 1}, 0xffff")
    a(f"s_mov_b32 s{sd + 2}, {nbytes}")
    a(f"s_mov_b32 s{sd + 3}, 0x00020000")


def emit_voffw(a):
    for j in range(5):
        a(f"v_add_u32 v12, {64 * j}, v1")
        a("v_mul_u32_u24 v13, 205, v12")
        a("v_lshrrev_b32 v13, 11, v13")
        a("v_mul_u32_u24 v14, 10, v13")
        a("v_sub_u32 v14, v12, v14")
        a("v_and_b32 v15, 0x33, v13")
        a("v_and_b32 v12, 4, v13")
        a("v_lshlrev_b32 v12, 1, v12")
        a("v_or_b32 v15, v15, v12")
        a("v_and_b32 v12, 8, v13")
        a("v_lshrrev_b32 v12, 1, v12")
        a("v_or_b32 v15, v15, v12")
        a("v_mul_u32_u24 v15, 0x500, v15")
        a("v_lshlrev_b32 v14, 4, v14")
        a(f"v_add_u32 v{2 + j}, v15, v14")


G1_TILES = 16 * 14
G1_WGS = 256
G1_LDS = 4 * 32768


def gen_gemm1(a):
    KS = D // 64
    a.raw(".text")
    a.raw(".globl gemm1_kernel")
    a.raw(".p2align 8")
    a.raw(".type gemm1_kernel,@function")
    a.label("gemm1_kernel")
    a(f"s_cmp_ge_u32 s2, {G1_WGS}")
    a("s_cbranch_scc1 G1_END")
    a("s_load_dwordx4 s[28:31], s[0:1], 0")
    a("s_load_dwordx2 s[32:33], s[0:1], 40")
    a(f"s_cmp_ge_u32 s2, {G1_TILES}")
    a("s_cbranch_scc1 G1_REPACK")
    a("s_and_b32 s24, s2, 7")
    a("s_lshr_b32 s25, s2, 3")
    a("s_and_b32 s26, s24, 3")
    a("s_lshl_b32 s26, s26, 2")
    a("s_and_b32 s27, s25, 3")
    a("s_add_u32 s26, s26, s27")
    a("s_lshr_b32 s24, s24, 2")
    a("s_mul_i32 s24, s24, 7")
    a("s_lshr_b32 s25, s25, 2")
    a("s_add_u32 s24, s24, s25")
    a("s_lshl_b32 s22, s26, 7")
    a("s_lshl_b32 s23, s24, 7")
    a("v_lshrrev_b32 v1, 6, v0")
    a("v_and_b32 v17, 63, v0")
    a("v_readfirstlane_b32 s21, v1")
    a("v_mov_b32 v1, v17")
    a("v_lshrrev_b32 v18, 3, v1")
    a("v_mul_u32_u24 v18, 0x500, v18")
    a("v_and_b32 v19, 7, v1")
    a("v_lshrrev_b32 v20, 4, v1")
    a("v_xor_b32 v21, v19, v20")
    a("v_lshlrev_b32 v21, 4, v21")
    a("v_add_u32 v2, v18, v21")
    a("v_xor_b32 v21, 4, v21" if False else "v_xor_b32 v21, v19, v20")
    a("v_xor_b32 v21, 4, v21")
    a("v_lshlrev_b32 v21, 4, v21")
    a("v_add_u32 v3, v18, v21")
    a("v_mul_u32_u24 v18, 0xd80, v20")
    a("v_and_b32 v19, 15, v1")
    a("v_lshlrev_b32 v21, 2, v20")
    a("v_xor_b32 v19, v19, v21")
    a("v_lshlrev_b32 v19, 4, v19")
    a("v_add_u32 v4, v18, v19")
    a("s_and_b32 s34, s21, 1")
    a("s_lshr_b32 s35, s21, 1")
    a("s_lshl_b32 s24, s21, 5")
    a("s_add_u32 s24, s24, s22")
    a("s_mul_i32 s17, s24, 1280")
    a("s_mul_i32 s18, s21, %d" % (16 * 3456))
    a("s_lshl_b32 s24, s23, 1")
    a("s_add_u32 s18, s18, s24")
    a("s_lshl_b32 s19, s21, 12")
    a("s_add_u32 s20, s19, 16384")
    a("v_and_b32 v18, 31, v1")
    a("s_lshl_b32 s24, s34, 6")
    a("v_add_u32 v18, s24, v18")
    a("v_lshrrev_b32 v19, 1, v18")
    a("v_and_b32 v19, 7, v19")
    a("v_lshrrev_b32 v20, 5, v1")
    a("v_xor_b32 v19, v19, v20")
    a("v_lshlrev_b32 v18, 7, v18")
    for kk in range(4):
        a(f"v_xor_b32 v20, {2 * kk}, v19")
        a("v_lshlrev_b32 v20, 4, v20")
        a(f"v_add_u32 v{5 + kk}, v18, v20")
        a(f"v_add_u32 v{9 + kk}, 0x10000, v{5 + kk}")
    a("v_lshrrev_b32 v18, 5, v1")
    a("v_lshlrev_b32 v18, 3, v18")
    a("v_and_b32 v19, 15, v1")
    a("v_lshrrev_b32 v19, 2, v19")
    a("v_add_u32 v18, v18, v19")
    a("v_lshlrev_b32 v18, 8, v18")
    a("v_and_b32 v20, 1, v1")
    a("v_lshlrev_b32 v20, 3, v20")
    a("v_add_u32 v18, v18, v20")
    a("v_add_u32 v18, 0x4000, v18")
    a("v_lshrrev_b32 v20, 4, v1")
    a("v_and_b32 v20, 1, v20")
    a("v_lshlrev_b32 v20, 1, v20")
    a("v_and_b32 v21, 3, v1")
    a("v_lshrrev_b32 v21, 1, v21")
    a("v_add_u32 v20, v20, v21")
    a("s_lshl_b32 s24, s35, 3")
    a("v_add_u32 v20, s24, v20")
    a("v_lshlrev_b32 v19, 2, v19")
    for sn in range(2):
        a(f"v_add_u32 v21, {4 * sn}, v20")
        a("v_xor_b32 v21, v21, v19")
        a("v_lshlrev_b32 v21, 4, v21")
        a(f"v_add_u32 v{13 + sn}, v18, v21")
        a(f"v_add_u32 v{15 + sn}, 0x10000, v{13 + sn}")
    a("s_waitcnt lgkmcnt(0)")
    srd(a, 4, 28, X_BYTES)
    srd(a, 8, 30, W1_BYTES)
    srd(a, 12, 32, H_BYTES)
    srd(a, 56, 32, WS_BYTES)
    a("s_nop 4")
    stamp(a, 0, 0, 21, 56)

    a.reset_track()

    def dma(stage, j):
        buf = stage % 4
        jj = j & 3

        def f():
            if j < 4:
                a(f"s_add_u32 m0, s19, {buf * 32768 + jj * 1024}")
                a(f"s_add_u32 s16, s17, {8 * jj * 1280 + stage * 128}")
                a.vm(f"buffer_load_dwordx4 v{2 + (jj & 1)}, s[4:7], s16 offen lds", ("st", stage))
            else:
                a(f"s_add_u32 m0, s20, {buf * 32768 + jj * 1024}")
                a(f"s_add_u32 s16, s18, {(stage * 64 + 4 * jj) * 3456}")
                a.vm("buffer_load_dwordx4 v4, s[8:11], s16 offen lds", ("st", stage))
        return f

    AF = [32, 40]
    BF = [48, 56]
    ACC = 64

    def read_ops(stage, kk, st):
        buf = stage % 4
        hi = buf >= 2
        boff = (buf & 1) * 32768
        ops = []
        tag = ("fr", stage, kk)
        for sm in range(2):
            br = (9 if hi else 5) + kk
            ops.append(lambda br=br, sm=sm: a.ds(f"ds_read_b128 {vr(BF[st] + sm * 4, 4)}, v{br} offset:{boff + sm * 4096}", tag))
            sn = sm
            ar = (15 if hi else 13) + sn
            for second in range(2):
                ops.append(lambda ar=ar, sn=sn, second=second: a.ds(
                    f"ds_read_b64_tr_b16 {vr(AF[st] + sn * 4 + second * 2, 2)}, v{ar} offset:{boff + kk * 4096 + second * 1024}", tag))
        return ops

    def dma_for(i, kk):
        if kk == 3:
            s_, p = i + 4, 0
        else:
            s_, p = i + 3, kk + 1
        if s_ >= KS:
            return []
        return [dma(s_, p), dma(s_, 4 + p)]

    for s_ in range(3):
        for j in (0, 4, 1, 5, 2, 6, 3, 7):
            dma(s_, j)()
    for f in dma_for(-1, 3):
        f()
    if TOUCH:
        a("s_lshr_b32 s39, s2, 3")
        a("s_lshr_b32 s40, s39, 2")
        a("s_mul_i32 s40, s40, 184")
        a("s_mul_i32 s42, s21, 46")
        a("s_add_u32 s40, s40, s42")
        a("s_lshl_b32 s40, s40, 7")
        a("s_mul_i32 s42, s22, 1280")
        a("s_add_u32 s40, s40, s42")
        a("v_min_u32 v24, 45, v1")
        a("v_lshlrev_b32 v24, 7, v24")
        a.vm("buffer_load_dword v25, v24, s[4:7], s40 offen", ("touch", 0))
        a("s_lshl_b32 s41, s39, 4")
        a("s_lshl_b32 s42, s21, 2")
        a("s_add_u32 s41, s41, s42")
        a("s_add_u32 s41, s41, 192")
        a("s_mul_i32 s41, s41, 3456")
        a("s_and_b32 s42, s2, 7")
        a("s_lshr_b32 s42, s42, 2")
        a("s_mul_i32 s42, s42, 1792")
        a("s_add_u32 s41, s41, s42")
        a("v_min_u32 v26, 55, v1")
        a("v_mul_u32_u24 v27, 0x4925, v26")
        a("v_lshrrev_b32 v27, 18, v27")
        a("v_mul_u32_u24 v28, 14, v27")
        a("v_sub_u32 v28, v26, v28")
        a("v_mul_u32_u24 v27, 0xd80, v27")
        a("v_lshlrev_b32 v28, 7, v28")
        a("v_add_u32 v26, v27, v28")
        a.vm("buffer_load_dword v27, v26, s[8:11], s41 offen", ("touch", 0))
    a.wait(vtag=("st", 0))
    a("s_barrier")
    if STAMP:
        a("s_waitcnt vmcnt(0)")
        a.vq = []
    stamp(a, 1, 0, 21, 56)
    for f in read_ops(0, 0, 0):
        f()
    for i in range(KS):
        for kk in range(4):
            st = kk & 1
            a.wait(ltag=("fr", i, kk))
            if kk == 3 and i + 1 < KS:
                a.wait(vtag=("st", i + 1))
                a("s_barrier")
            mf = []
            for sn in range(2):
                for sm in range(2):
                    c = ACC + (sn * 2 + sm) * 16
                    src = "0" if (i == 0 and kk == 0) else vr(c, 16)
                    mf.append(f"v_mfma_f32_32x32x16_bf16 {vr(c, 16)}, {vr(AF[st] + sn * 4, 4)}, {vr(BF[st] + sm * 4, 4)}, {src}")
            if kk < 3:
                rd = read_ops(i, kk + 1, st ^ 1)
            elif i + 1 < KS:
                rd = read_ops(i + 1, 0, st ^ 1)
            else:
                rd = []
            dm = dma_for(i, kk)
            fill = []
            if rd:
                fill = [rd[0], rd[1], rd[2]] + dm[:1] + [rd[3], rd[4], rd[5]] + dm[1:]
            else:
                fill = dm
            interleave(a, mf, fill)
    stamp(a, 2, 0, 21, 56)
    if NO_EPI:
        a("s_branch G1_END")
    a("s_lshl_b32 s24, s35, 6")
    a("s_add_u32 s24, s24, s23")
    a(f"s_cmp_ge_u32 s24, {F}")
    a("s_cbranch_scc1 G1_END")
    a("v_lshrrev_b32 v18, 4, v1")
    a("v_and_b32 v18, 1, v18")
    a("s_lshl_b32 s24, s34, 2")
    a("v_add_u32 v18, s24, v18")
    a(f"v_mul_u32_u24 v18, {54 * 1024}, v18")
    a("v_lshrrev_b32 v19, 5, v1")
    a("v_lshlrev_b32 v19, 4, v19")
    a("v_and_b32 v20, 15, v1")
    a("v_add_u32 v19, v19, v20")
    a("v_lshlrev_b32 v19, 4, v19")
    a("v_add_u32 v2, v18, v19")
    a(f"v_add_u32 v3, {2 * 54 * 1024}, v2")
    a("s_lshr_b32 s16, s22, 4")
    a("s_mul_i32 s16, s16, 54")
    a("s_lshl_b32 s24, s35, 6")
    a("s_add_u32 s24, s24, s23")
    a("s_lshr_b32 s24, s24, 5")
    a("s_add_u32 s16, s16, s24")
    a("s_lshl_b32 s16, s16, 10")
    a("s_mov_b32 s36, 0xbfb8aa3b")
    a("s_mov_b32 s37, 0xbfb8aa3b")
    a("s_mov_b32 s38, 0xffff0000")
    a("s_nop 15")
    for sn in range(2):
        for sm in range(2):
            c = ACC + (sn * 2 + sm) * 16
            for qq in range(2):
                X = 32
                E = 40
                P = 48
                for j in range(4):
                    a(f"v_cvt_pk_bf16_f32 v{P + j}, v{c + qq * 8 + 2 * j}, v{c + qq * 8 + 2 * j + 1}")
                for j in range(4):
                    a(f"v_lshlrev_b32 v{X + 2 * j}, 16, v{P + j}")
                    a(f"v_and_b32 v{X + 2 * j + 1}, s38, v{P + j}")
                for j in range(4):
                    a(f"v_pk_mul_f32 {vr(E + 2 * j, 2)}, {vr(X + 2 * j, 2)}, s[36:37]")
                for j in range(8):
                    if not NO_SILU:
                        a(f"v_exp_f32 v{E + j}, v{E + j}")
                for j in range(4):
                    a(f"v_pk_add_f32 {vr(E + 2 * j, 2)}, {vr(E + 2 * j, 2)}, 1.0 op_sel_hi:[1,0]")
                for j in range(8):
                    if not NO_SILU:
                        a(f"v_rcp_f32 v{E + j}, v{E + j}")
                for j in range(4):
                    a(f"v_pk_mul_f32 {vr(X + 2 * j, 2)}, {vr(X + 2 * j, 2)}, {vr(E + 2 * j, 2)}")
                O = 52 + (qq * 4)
                for j in range(4):
                    a(f"v_cvt_pk_bf16_f32 v{O + j}, v{X + 2 * j}, v{X + 2 * j + 1}")
                a("s_nop 1")
                a(f"v_permlane32_swap_b32 v{O}, v{O + 2}")
                a(f"v_permlane32_swap_b32 v{O + 1}, v{O + 3}")
                if not NO_ST:
                    a(f"buffer_store_dwordx4 {vr(O, 4)}, v{2 + sm}, s[12:15], s16 offen offset:{sn * 1024 + qq * 512} {STF}")
    stamp(a, 3, 0, 21, 56)
    a("s_waitcnt vmcnt(0)")
    stamp(a, 4, 0, 21, 56)
    a("s_endpgm")
    a.label("G1_REPACK")
    a("s_load_dwordx2 s[36:37], s[0:1], 16")
    a("v_lshrrev_b32 v1, 6, v0")
    a("v_and_b32 v12, 63, v0")
    a("v_readfirstlane_b32 s21, v1")
    a("v_mov_b32 v1, v12")
    emit_voffw(a)
    a("v_lshlrev_b32 v7, 4, v1")
    a(f"s_sub_u32 s22, s2, {G1_TILES}")
    a("s_lshl_b32 s22, s22, 2")
    a("s_add_u32 s22, s22, s21")
    a("s_waitcnt lgkmcnt(0)")
    srd(a, 8, 36, W2_BYTES)
    srd(a, 12, 32, WS_BYTES)
    a("s_nop 4")
    def hb_scalars(it, ssrc, sdst):
        a(f"s_add_u32 s23, s22, {128 * it}")
        a("s_lshr_b32 s24, s23, 1")
        a("s_mul_i32 s25, s24, 1214")
        a("s_lshr_b32 s25, s25, 15")
        a("s_mul_i32 s26, s25, 27")
        a("s_sub_u32 s26, s24, s26")
        a("s_and_b32 s27, s23, 1")
        a("s_lshl_b32 s26, s26, 1")
        a("s_add_u32 s26, s26, s27")
        a("s_mul_i32 s26, s26, 40960")
        a("s_mul_i32 s25, s25, 160")
        a(f"s_add_u32 s{ssrc}, s26, s25")
        a("s_mul_i32 s27, s23, 5120")
        a(f"s_add_u32 s{sdst}, s27, {W2P_OFF}")
        a(f"s_add_u32 s{sdst + 1}, s{sdst}, 4096")

    def hb_stores(it, last_wait):
        for j in range(5):
            a(f"s_waitcnt vmcnt({last_wait - j})")
            if j < 4:
                a(f"buffer_store_dwordx4 {vr(16 + it * 20 + j * 4, 4)}, v7, s[12:15], s{48 + it * 2} offen offset:{j * 1024} {STF}")
            else:
                a(f"buffer_store_dwordx4 {vr(16 + it * 20 + j * 4, 4)}, v7, s[12:15], s{49 + it * 2} offen {STF}")

    for it in range(3):
        hb_scalars(it, 40 + it, 48 + it * 2)
        for j in range(5):
            a(f"buffer_load_dwordx4 {vr(16 + it * 20 + j * 4, 4)}, v{2 + j}, s[8:11], s{40 + it} offen")
    a(f"s_cmp_ge_u32 s22, {432 - 384}")
    a("s_cbranch_scc1 G1_RP3")
    hb_scalars(3, 43, 54)
    for j in range(5):
        a(f"buffer_load_dwordx4 {vr(16 + 60 + j * 4, 4)}, v{2 + j}, s[8:11], s43 offen")
    for it in range(4):
        for j in range(5):
            a(f"s_waitcnt vmcnt({19})")
            if j < 4:
                a(f"buffer_store_dwordx4 {vr(16 + it * 20 + j * 4, 4)}, v7, s[12:15], s{48 + it * 2} offen offset:{j * 1024} {STF}")
            else:
                a(f"buffer_store_dwordx4 {vr(16 + it * 20 + j * 4, 4)}, v7, s[12:15], s{49 + it * 2} offen {STF}")
    a("s_endpgm")
    a.label("G1_RP3")
    for it in range(3):
        for j in range(5):
            a(f"s_waitcnt vmcnt({14})")
            if j < 4:
                a(f"buffer_store_dwordx4 {vr(16 + it * 20 + j * 4, 4)}, v7, s[12:15], s{48 + it * 2} offen offset:{j * 1024} {STF}")
            else:
                a(f"buffer_store_dwordx4 {vr(16 + it * 20 + j * 4, 4)}, v7, s[12:15], s{49 + it * 2} offen {STF}")
    a.label("G1_END")
    a("s_endpgm")
    a.raw(kd("gemm1_kernel", 256 if STAMP else 128))


G2_WGS = 256
G2_LDS = 4 * 3 * 10240


def gen_gemm2(a):
    a.raw(".text")
    a.raw(".globl gemm2_kernel")
    a.raw(".p2align 8")
    a.raw(".type gemm2_kernel,@function")
    a.label("gemm2_kernel")
    a(f"s_cmp_ge_u32 s2, {G2_WGS}")
    a("s_cbranch_scc1 G2_END")
    a("s_load_dwordx4 s[28:31], s[0:1], 16")
    a("s_load_dwordx2 s[32:33], s[0:1], 40")
    a("s_and_b32 s24, s2, 7")
    a("s_lshr_b32 s25, s2, 3")
    a("s_and_b32 s26, s24, 3")
    a("s_lshl_b32 s26, s26, 3")
    a("s_and_b32 s27, s25, 7")
    a("s_add_u32 s26, s26, s27")
    a("s_lshr_b32 s24, s24, 2")
    a("s_lshl_b32 s24, s24, 2")
    a("s_lshr_b32 s25, s25, 3")
    a("s_add_u32 s34, s24, s25")
    a("s_lshl_b32 s20, s26, 6")
    a("s_mul_i32 s21, s34, 80")
    a("v_lshrrev_b32 v1, 6, v0")
    a("v_and_b32 v12, 63, v0")
    a("v_readfirstlane_b32 s19, v1")
    a("v_mov_b32 v1, v12")
    a("v_lshlrev_b32 v2, 4, v1")
    a("s_lshr_b32 s24, s20, 4")
    a(f"s_mul_i32 s24, s24, {54 * 1024}")
    a("v_add_u32 v7, s24, v2")
    for f in range(1, 4):
        a(f"v_add_u32 v{7 + f}, {54 * 1024 * f}, v7")
    a("v_lshrrev_b32 v12, 5, v1")
    a("v_lshlrev_b32 v12, 4, v12")
    a("v_lshrrev_b32 v13, 4, v1")
    a("v_and_b32 v13, 1, v13")
    a("v_lshlrev_b32 v13, 2, v13")
    a("v_add_u32 v12, v12, v13")
    a("v_and_b32 v13, 15, v1")
    a("v_lshrrev_b32 v13, 2, v13")
    a("v_add_u32 v12, v12, v13")
    a("v_mul_u32_u24 v12, 160, v12")
    a("v_and_b32 v13, 3, v1")
    a("v_lshlrev_b32 v13, 3, v13")
    a("v_add_u32 v12, v12, v13")
    a("s_mul_i32 s18, s19, 30720")
    a("v_add_u32 v11, s18, v12")
    a("s_mul_i32 s17, s34, 27")
    a("s_add_u32 s17, s17, s19")
    a("s_mul_i32 s17, s17, 10240")
    a(f"s_add_u32 s17, s17, {W2P_OFF}")
    a("s_lshl_b32 s23, s19, 11")
    a("s_waitcnt lgkmcnt(0)")
    srd(a, 4, 32, H_BYTES)
    srd(a, 8, 32, WS_BYTES)
    srd(a, 12, 30, O_BYTES)
    a("s_nop 4")
    stamp(a, 0, 1, 19, 8)

    AFR = [16, 36]
    HB = 56
    ACC = 152

    a.reset_track()

    def vm_ops(t):
        b = t % 3
        ops = []
        tag = ("st", t)
        for j in range(10):
            def f(j=j):
                a(f"s_add_u32 m0, s18, {b * 10240 + j * 1024}")
                a(f"s_add_u32 s16, s17, {t * 40960 + j * 1024}")
                a.vm(f"buffer_load_dwordx4 v2, s[8:11], s16 offen lds", tag)
            ops.append(f)
        hops = []
        for f_ in range(4):
            for kk in range(2):
                def g(f_=f_, kk=kk):
                    a(f"s_add_u32 s22, s23, {t * 8192}")
                    a.vm(f"buffer_load_dwordx4 {vr(HB + b * 32 + (f_ * 2 + kk) * 4, 4)}, v{7 + f_}, s[4:7], s22 offen offset:{kk * 1024}", tag)
                hops.append(g)
        out = []
        while ops or hops:
            if ops:
                out.append(ops.pop(0))
            if hops:
                out.append(hops.pop(0))
        return out

    def rd_ops(t, kk):
        b = t % 3
        ops = []
        for ns in range(5):
            for second in range(2):
                ops.append(lambda ns=ns, second=second: a.ds(
                    f"ds_read_b64_tr_b16 {vr(AFR[kk] + ns * 4 + second * 2, 2)}, v11 offset:{b * 10240 + kk * 32 * 160 + second * 8 * 160 + ns * 32}", ("fr", t, kk)))
        return ops

    def half(t, kk, cnt):
        b = t % 3
        a.wait(ltag=("fr", t, kk))
        if kk == 1 and t + 1 < cnt:
            a.wait(vtag=("st", t + 1))
        mf = []
        for f_ in range(4):
            for ns in range(5):
                c = ACC + (f_ * 5 + ns) * 4
                src = "0" if (t == 0 and kk == 0) else vr(c, 4)
                mf.append(f"v_mfma_f32_16x16x32_bf16 {vr(c, 4)}, {vr(AFR[kk] + ns * 4, 4)}, {vr(HB + b * 32 + (f_ * 2 + kk) * 4, 4)}, {src}")
        if kk == 0:
            rd = rd_ops(t, 1)
        elif t + 1 < cnt:
            rd = rd_ops(t + 1, 0)
        else:
            rd = []
        vm = vm_ops(t + 2)[kk * 9:kk * 9 + 9] if t + 2 < cnt else []
        fill = []
        while rd or vm:
            if rd:
                fill.append(rd.pop(0))
            if vm:
                fill.append(vm.pop(0))
        interleave(a, mf, fill)

    for f in vm_ops(0):
        f()
    for f in vm_ops(1):
        f()
    a.wait(vtag=("st", 0))
    stamp(a, 1, 1, 19, 8)
    for f in rd_ops(0, 0):
        f()
    for t in range(4):
        half(t, 0, 7)
        half(t, 1, 7)
    a("s_cmp_eq_u32 s19, 3")
    a("s_cbranch_scc1 G2_SHORT")
    saved = (list(a.vq), list(a.lq))
    for t in range(4, 7):
        half(t, 0, 7)
        half(t, 1, 7)
    a("s_branch G2_RED")
    a.label("G2_SHORT")
    a.vq, a.lq = list(saved[0]), list(saved[1])
    for t in range(4, 6):
        half(t, 0, 6)
        half(t, 1, 6)
    a.label("G2_RED")
    stamp(a, 2, 1, 19, 8)
    a("v_lshlrev_b32 v12, 4, v1")
    a("s_mul_i32 s24, s19, 20480")
    a("v_add_u32 v13, s24, v12")
    a("s_mul_i32 s24, s19, 5120")
    a("v_add_u32 v14, s24, v12")
    a("v_add_u32 v15, 40960, v14")
    a("s_nop 7")
    a("s_barrier")
    for f in range(4):
        for ns in range(5):
            a(f"ds_write_b128 v13, {vr(ACC + (f * 5 + ns) * 4, 4)} offset:{(f * 5 + ns) * 1024}")
    a("s_waitcnt lgkmcnt(0)")
    a("s_barrier")
    R = 16
    for src in range(4):
        for ns in range(5):
            a(f"ds_read_b128 {vr(R + (src * 5 + ns) * 4, 4)}, v{14 + (src >> 1)} offset:{(src & 1) * 20480 + ns * 1024}")
    a("v_and_b32 v12, 15, v1")
    a("s_lshl_b32 s24, s19, 4")
    a("s_add_u32 s24, s24, s20")
    a("v_add_u32 v12, s24, v12")
    a("v_mul_u32_u24 v12, 0x500, v12")
    a("v_lshrrev_b32 v13, 4, v1")
    a("v_lshlrev_b32 v13, 3, v13")
    a("s_lshl_b32 s24, s21, 1")
    a("v_add_u32 v13, s24, v13")
    a("v_add_u32 v12, v12, v13")
    a("s_waitcnt lgkmcnt(0)")
    for ns in range(5):
        for r in range(2):
            d0 = R + ns * 4 + r * 2
            for src in range(1, 4):
                a(f"v_pk_add_f32 {vr(d0, 2)}, {vr(d0, 2)}, {vr(R + (src * 5 + ns) * 4 + r * 2, 2)}")
    for ns in range(5):
        d0 = R + ns * 4
        a(f"v_cvt_pk_bf16_f32 v{100 + ns * 2}, v{d0}, v{d0 + 1}")
        a(f"v_cvt_pk_bf16_f32 v{101 + ns * 2}, v{d0 + 2}, v{d0 + 3}")
    for ns in range(5):
        a(f"buffer_store_dwordx2 {vr(100 + ns * 2, 2)}, v12, s[12:15], 0 offen offset:{ns * 32}")
    stamp(a, 3, 1, 19, 8)
    a("s_waitcnt vmcnt(0)")
    stamp(a, 4, 1, 19, 8)
    a.label("G2_END")
    a("s_endpgm")
    a.raw(kd("gemm2_kernel", 256 if STAMP else 232))


def main():
    for c in range(320):
        assert (c * 205) >> 11 == c // 10
    for b in range(216):
        assert (b * 1214) >> 15 == b // 27
    a = Asm()
    a.raw(HEADER.format(g1=G1_WGS, l1=G1_LDS, g2=G2_WGS, l2=G2_LDS).rstrip("\n"))
    gen_gemm1(a)
    gen_gemm2(a)
    open(OUT, "w").write(a.text())
    print("wrote", OUT, len(a.lines), "lines")


main()
```

```python
import os, sys
NO_VMEM = os.environ.get("NO_VMEM") == "1"
NO_MFMA = os.environ.get("NO_MFMA") == "1"
NO_EPI = os.environ.get("NO_EPI") == "1"
TOUCH = os.environ.get("TOUCH", "0") == "1"
STF = os.environ.get("ST_FLAG", "")
STAMP = os.environ.get("STAMP") == "1"
NO_ST = os.environ.get("NO_ST") == "1"
NO_SILU = os.environ.get("NO_SILU") == "1"

OUT = sys.argv[1] if len(sys.argv) > 1 else "standalone__dense_activation_silu__prompt.s"

M, D, F = 2048, 640, 1728
X_BYTES = M * D * 2
W1_BYTES = D * F * 2
W2_BYTES = F * D * 2
H_BYTES = M * F * 2
O_BYTES = M * D * 2
W2P_OFF = 8 << 20
WS_BYTES = (32 << 20) if os.environ.get("STAMP") == "1" else W2P_OFF + W2_BYTES


class Asm:
    def __init__(self):
        self.lines = []

    def __call__(self, s):
        self.lines.append("    " + s)

    def raw(self, s):
        self.lines.append(s)

    def label(self, s):
        self.lines.append(s + ":")

    def text(self):
        return "\n".join(self.lines) + "\n"

    def reset_track(self):
        self.vq = []
        self.lq = []

    def vm(self, s, tag):
        if NO_VMEM:
            return
        self(s)
        self.vq.append(tag)

    def ds(self, s, tag):
        self(s)
        self.lq.append(tag)

    def _n_after(self, q, tag):
        idx = [i for i, t in enumerate(q) if t == tag]
        if not idx:
            return None
        return len(q) - 1 - idx[-1]

    def wait(self, vtag=None, ltag=None):
        parts = []
        if vtag is not None:
            n = self._n_after(self.vq, vtag)
            if n is not None:
                assert n <= 63
                parts.append(f"vmcnt({n})")
                self.vq = self.vq[len(self.vq) - n:] if n else []
        if ltag is not None:
            n = self._n_after(self.lq, ltag)
            if n is not None:
                assert n <= 15, n
                parts.append(f"lgkmcnt({n})")
                self.lq = self.lq[len(self.lq) - n:] if n else []
        if parts:
            self("s_waitcnt " + " ".join(parts))


def interleave(a, mfmas, fillers):
    n = len(mfmas)
    k = len(fillers)
    j = 0
    for i, m in enumerate(mfmas):
        if not NO_MFMA:
            a(m)
        tgt = (i + 1) * k // n
        while j < tgt:
            fillers[j]()
            j += 1


def vr(a, n):
    return f"v[{a}:{a + n - 1}]"


HEADER = """; Kernarg layout for this problem (48 bytes, ptrs only, base s[0:1]):
; @launch kernel=gemm1_kernel grid=({g1},1,1) block=(256,1,1) lds={l1}
; @launch kernel=gemm2_kernel grid=({g2},1,1) block=(256,1,1) lds={l2}
.amdgcn_target "amdgcn-amd-amdhsa--gfx950"
"""


def kd(name, vgpr, sgpr=64):
    acc = (vgpr + 3) // 4 * 4
    return f""".section .rodata,"a"
.p2align 6
.amdhsa_kernel {name}
  .amdhsa_next_free_vgpr {vgpr}
  .amdhsa_next_free_sgpr {sgpr}
  .amdhsa_accum_offset {acc}
  .amdhsa_group_segment_fixed_size 0
  .amdhsa_kernarg_size 48
  .amdhsa_user_sgpr_count 2
  .amdhsa_user_sgpr_kernarg_segment_ptr 1
  .amdhsa_system_sgpr_workgroup_id_x 1
.end_amdhsa_kernel
"""


def stamp(a, idx, kern, wave_s, srd_s, real=False):
    if not STAMP:
        return
    if idx in (0, 4) and not real:
        stamp(a, idx + 8, kern, wave_s, srd_s, True)
    a("s_memrealtime s[60:61]" if real else "s_memtime s[60:61]")
    a("s_waitcnt lgkmcnt(0)")
    a(f"s_cmp_lg_u32 s{wave_s}, 0")
    a(f"s_cbranch_scc1 STAMP_SKIP_{kern}_{idx}")
    a("v_mov_b32 v250, s60")
    a("v_mov_b32 v251, s61")
    a(f"s_lshl_b32 s62, s2, 7")
    a(f"s_add_u32 s62, s62, {(16 << 20) + kern * 65536 + idx * 8}")
    a("v_mov_b32 v252, 0")
    a(f"buffer_store_dwordx2 v[250:251], v252, s[{srd_s}:{srd_s + 3}], s62 offen")
    a.label(f"STAMP_SKIP_{kern}_{idx}")


def srd(a, sd, sp, nbytes):
    a(f"s_mov_b32 s{sd}, s{sp}")
    a(f"s_and_b32 s{sd + 1}, s{sp + 1}, 0xffff")
    a(f"s_mov_b32 s{sd + 2}, {nbytes}")
    a(f"s_mov_b32 s{sd + 3}, 0x00020000")


def emit_voffw(a):
    for j in range(5):
        a(f"v_add_u32 v12, {64 * j}, v1")
        a("v_mul_u32_u24 v13, 205, v12")
        a("v_lshrrev_b32 v13, 11, v13")
        a("v_mul_u32_u24 v14, 10, v13")
        a("v_sub_u32 v14, v12, v14")
        a("v_and_b32 v15, 0x33, v13")
        a("v_and_b32 v12, 4, v13")
        a("v_lshlrev_b32 v12, 1, v12")
        a("v_or_b32 v15, v15, v12")
        a("v_and_b32 v12, 8, v13")
        a("v_lshrrev_b32 v12, 1, v12")
        a("v_or_b32 v15, v15, v12")
        a("v_mul_u32_u24 v15, 0x500, v15")
        a("v_lshlrev_b32 v14, 4, v14")
        a(f"v_add_u32 v{2 + j}, v15, v14")


G1_TILES = 16 * 14
G1_WGS = 256
G1_LDS = 4 * 32768


def gen_gemm1(a):
    KS = D // 64
    a.raw(".text")
    a.raw(".globl gemm1_kernel")
    a.raw(".p2align 8")
    a.raw(".type gemm1_kernel,@function")
    a.label("gemm1_kernel")
    a(f"s_cmp_ge_u32 s2, {G1_WGS}")
    a("s_cbranch_scc1 G1_END")
    a("s_load_dwordx4 s[28:31], s[0:1], 0")
    a("s_load_dwordx2 s[32:33], s[0:1], 40")
    a(f"s_cmp_ge_u32 s2, {G1_TILES}")
    a("s_cbranch_scc1 G1_REPACK")
    a("s_and_b32 s24, s2, 7")
    a("s_lshr_b32 s25, s2, 3")
    if os.environ.get("G1MAP") == "2":
        a("s_lshl_b32 s26, s24, 1")
        a("s_and_b32 s27, s25, 1")
        a("s_add_u32 s26, s26, s27")
        a("s_lshr_b32 s24, s25, 1")
    else:
        a("s_and_b32 s26, s24, 3")
        a("s_lshl_b32 s26, s26, 2")
        a("s_and_b32 s27, s25, 3")
        a("s_add_u32 s26, s26, s27")
        a("s_lshr_b32 s24, s24, 2")
        a("s_mul_i32 s24, s24, 7")
        a("s_lshr_b32 s25, s25, 2")
        a("s_add_u32 s24, s24, s25")
    a("s_lshl_b32 s22, s26, 7")
    a("s_lshl_b32 s23, s24, 7")
    a("v_lshrrev_b32 v1, 6, v0")
    a("v_and_b32 v17, 63, v0")
    a("v_readfirstlane_b32 s21, v1")
    a("v_mov_b32 v1, v17")
    a("v_lshrrev_b32 v18, 3, v1")
    a("v_mul_u32_u24 v18, 0x500, v18")
    a("v_and_b32 v19, 7, v1")
    a("v_lshrrev_b32 v20, 4, v1")
    a("v_xor_b32 v21, v19, v20")
    a("v_lshlrev_b32 v21, 4, v21")
    a("v_add_u32 v2, v18, v21")
    a("v_xor_b32 v21, 4, v21" if False else "v_xor_b32 v21, v19, v20")
    a("v_xor_b32 v21, 4, v21")
    a("v_lshlrev_b32 v21, 4, v21")
    a("v_add_u32 v3, v18, v21")
    a("v_mul_u32_u24 v18, 0xd80, v20")
    a("v_and_b32 v19, 15, v1")
    a("v_lshlrev_b32 v21, 2, v20")
    a("v_xor_b32 v19, v19, v21")
    a("v_lshlrev_b32 v19, 4, v19")
    a("v_add_u32 v4, v18, v19")
    a("s_and_b32 s34, s21, 1")
    a("s_lshr_b32 s35, s21, 1")
    a("s_lshl_b32 s24, s21, 5")
    a("s_add_u32 s24, s24, s22")
    a("s_mul_i32 s17, s24, 1280")
    a("s_mul_i32 s18, s21, %d" % (16 * 3456))
    a("s_lshl_b32 s24, s23, 1")
    a("s_add_u32 s18, s18, s24")
    a("s_lshl_b32 s19, s21, 12")
    a("s_add_u32 s20, s19, 16384")
    a("v_and_b32 v18, 31, v1")
    a("s_lshl_b32 s24, s34, 6")
    a("v_add_u32 v18, s24, v18")
    a("v_lshrrev_b32 v19, 1, v18")
    a("v_and_b32 v19, 7, v19")
    a("v_lshrrev_b32 v20, 5, v1")
    a("v_xor_b32 v19, v19, v20")
    a("v_lshlrev_b32 v18, 7, v18")
    for kk in range(4):
        a(f"v_xor_b32 v20, {2 * kk}, v19")
        a("v_lshlrev_b32 v20, 4, v20")
        a(f"v_add_u32 v{5 + kk}, v18, v20")
        a(f"v_add_u32 v{9 + kk}, 0x10000, v{5 + kk}")
    a("v_lshrrev_b32 v18, 5, v1")
    a("v_lshlrev_b32 v18, 3, v18")
    a("v_and_b32 v19, 15, v1")
    a("v_lshrrev_b32 v19, 2, v19")
    a("v_add_u32 v18, v18, v19")
    a("v_lshlrev_b32 v18, 8, v18")
    a("v_and_b32 v20, 1, v1")
    a("v_lshlrev_b32 v20, 3, v20")
    a("v_add_u32 v18, v18, v20")
    a("v_add_u32 v18, 0x4000, v18")
    a("v_lshrrev_b32 v20, 4, v1")
    a("v_and_b32 v20, 1, v20")
    a("v_lshlrev_b32 v20, 1, v20")
    a("v_and_b32 v21, 3, v1")
    a("v_lshrrev_b32 v21, 1, v21")
    a("v_add_u32 v20, v20, v21")
    a("s_lshl_b32 s24, s35, 3")
    a("v_add_u32 v20, s24, v20")
    a("v_lshlrev_b32 v19, 2, v19")
    for sn in range(2):
        a(f"v_add_u32 v21, {4 * sn}, v20")
        a("v_xor_b32 v21, v21, v19")
        a("v_lshlrev_b32 v21, 4, v21")
        a(f"v_add_u32 v{13 + sn}, v18, v21")
        a(f"v_add_u32 v{15 + sn}, 0x10000, v{13 + sn}")
    a("s_waitcnt lgkmcnt(0)")
    srd(a, 4, 28, X_BYTES)
    srd(a, 8, 30, W1_BYTES)
    srd(a, 12, 32, H_BYTES)
    srd(a, 56, 32, WS_BYTES)
    a("s_nop 4")
    stamp(a, 0, 0, 21, 56)

    a.reset_track()

    def dma(stage, j):
        buf = stage % 4
        jj = j & 3

        def f():
            if j < 4:
                a(f"s_add_u32 m0, s19, {buf * 32768 + jj * 1024}")
                a(f"s_add_u32 s16, s17, {8 * jj * 1280 + stage * 128}")
                a.vm(f"buffer_load_dwordx4 v{2 + (jj & 1)}, s[4:7], s16 offen lds", ("st", stage))
            else:
                a(f"s_add_u32 m0, s20, {buf * 32768 + jj * 1024}")
                a(f"s_add_u32 s16, s18, {(stage * 64 + 4 * jj) * 3456}")
                a.vm("buffer_load_dwordx4 v4, s[8:11], s16 offen lds", ("st", stage))
        return f

    AF = [32, 40]
    BF = [48, 56]
    ACC = 64

    def read_ops(stage, kk, st):
        buf = stage % 4
        hi = buf >= 2
        boff = (buf & 1) * 32768
        ops = []
        tag = ("fr", stage, kk)
        for sm in range(2):
            br = (9 if hi else 5) + kk
            ops.append(lambda br=br, sm=sm: a.ds(f"ds_read_b128 {vr(BF[st] + sm * 4, 4)}, v{br} offset:{boff + sm * 4096}", tag))
            sn = sm
            ar = (15 if hi else 13) + sn
            for second in range(2):
                ops.append(lambda ar=ar, sn=sn, second=second: a.ds(
                    f"ds_read_b64_tr_b16 {vr(AF[st] + sn * 4 + second * 2, 2)}, v{ar} offset:{boff + kk * 4096 + second * 1024}", tag))
        return ops

    def dma_for(i, kk):
        if kk == 3:
            s_, p = i + 4, 0
        else:
            s_, p = i + 3, kk + 1
        if s_ >= KS:
            return []
        return [dma(s_, p), dma(s_, 4 + p)]

    for s_ in range(3):
        for j in (0, 4, 1, 5, 2, 6, 3, 7):
            dma(s_, j)()
    for f in dma_for(-1, 3):
        f()
    if TOUCH:
        a("s_lshr_b32 s39, s2, 3")
        a("s_lshr_b32 s40, s39, 2")
        a("s_mul_i32 s40, s40, 184")
        a("s_mul_i32 s42, s21, 46")
        a("s_add_u32 s40, s40, s42")
        a("s_lshl_b32 s40, s40, 7")
        a("s_mul_i32 s42, s22, 1280")
        a("s_add_u32 s40, s40, s42")
        a("v_min_u32 v24, 45, v1")
        a("v_lshlrev_b32 v24, 7, v24")
        a.vm("buffer_load_dword v25, v24, s[4:7], s40 offen", ("touch", 0))
        a("s_lshl_b32 s41, s39, 4")
        a("s_lshl_b32 s42, s21, 2")
        a("s_add_u32 s41, s41, s42")
        a("s_add_u32 s41, s41, 192")
        a("s_mul_i32 s41, s41, 3456")
        a("s_and_b32 s42, s2, 7")
        a("s_lshr_b32 s42, s42, 2")
        a("s_mul_i32 s42, s42, 1792")
        a("s_add_u32 s41, s41, s42")
        a("v_min_u32 v26, 55, v1")
        a("v_mul_u32_u24 v27, 0x4925, v26")
        a("v_lshrrev_b32 v27, 18, v27")
        a("v_mul_u32_u24 v28, 14, v27")
        a("v_sub_u32 v28, v26, v28")
        a("v_mul_u32_u24 v27, 0xd80, v27")
        a("v_lshlrev_b32 v28, 7, v28")
        a("v_add_u32 v26, v27, v28")
        a.vm("buffer_load_dword v27, v26, s[8:11], s41 offen", ("touch", 0))
    a.wait(vtag=("st", 0))
    a("s_barrier")
    if STAMP:
        a("s_waitcnt vmcnt(0)")
        a.vq = []
    stamp(a, 1, 0, 21, 56)
    for f in read_ops(0, 0, 0):
        f()
    for i in range(KS):
        for kk in range(4):
            st = kk & 1
            a.wait(ltag=("fr", i, kk))
            if kk == 3 and i + 1 < KS:
                a.wait(vtag=("st", i + 1))
                a("s_barrier")
            mf = []
            for sn in range(2):
                for sm in range(2):
                    c = ACC + (sn * 2 + sm) * 16
                    src = "0" if (i == 0 and kk == 0) else vr(c, 16)
                    mf.append(f"v_mfma_f32_32x32x16_bf16 {vr(c, 16)}, {vr(AF[st] + sn * 4, 4)}, {vr(BF[st] + sm * 4, 4)}, {src}")
            if kk < 3:
                rd = read_ops(i, kk + 1, st ^ 1)
            elif i + 1 < KS:
                rd = read_ops(i + 1, 0, st ^ 1)
            else:
                rd = []
            dm = dma_for(i, kk)
            fill = []
            if rd:
                fill = [rd[0], rd[1], rd[2]] + dm[:1] + [rd[3], rd[4], rd[5]] + dm[1:]
            else:
                fill = dm
            interleave(a, mf, fill)
    stamp(a, 2, 0, 21, 56)
    if NO_EPI:
        a("s_branch G1_END")
    a("s_lshl_b32 s24, s35, 6")
    a("s_add_u32 s24, s24, s23")
    a(f"s_cmp_ge_u32 s24, {F}")
    a("s_cbranch_scc1 G1_END")
    a("v_lshrrev_b32 v18, 4, v1")
    a("v_and_b32 v18, 1, v18")
    a("s_lshl_b32 s24, s34, 2")
    a("v_add_u32 v18, s24, v18")
    a(f"v_mul_u32_u24 v18, {54 * 1024}, v18")
    a("v_lshrrev_b32 v19, 5, v1")
    a("v_lshlrev_b32 v19, 4, v19")
    a("v_and_b32 v20, 15, v1")
    a("v_add_u32 v19, v19, v20")
    a("v_lshlrev_b32 v19, 4, v19")
    a("v_add_u32 v2, v18, v19")
    a(f"v_add_u32 v3, {2 * 54 * 1024}, v2")
    a("s_lshr_b32 s16, s22, 4")
    a("s_mul_i32 s16, s16, 54")
    a("s_lshl_b32 s24, s35, 6")
    a("s_add_u32 s24, s24, s23")
    a("s_lshr_b32 s24, s24, 5")
    a("s_add_u32 s16, s16, s24")
    a("s_lshl_b32 s16, s16, 10")
    a("s_mov_b32 s36, 0xbfb8aa3b")
    a("s_mov_b32 s37, 0xbfb8aa3b")
    a("s_mov_b32 s38, 0xffff0000")
    a("s_nop 15")
    for sn in range(2):
        for sm in range(2):
            c = ACC + (sn * 2 + sm) * 16
            for qq in range(2):
                X = 32
                E = 40
                P = 48
                for j in range(4):
                    a(f"v_cvt_pk_bf16_f32 v{P + j}, v{c + qq * 8 + 2 * j}, v{c + qq * 8 + 2 * j + 1}")
                for j in range(4):
                    a(f"v_lshlrev_b32 v{X + 2 * j}, 16, v{P + j}")
                    a(f"v_and_b32 v{X + 2 * j + 1}, s38, v{P + j}")
                for j in range(4):
                    a(f"v_pk_mul_f32 {vr(E + 2 * j, 2)}, {vr(X + 2 * j, 2)}, s[36:37]")
                for j in range(8):
                    if not NO_SILU:
                        a(f"v_exp_f32 v{E + j}, v{E + j}")
                for j in range(4):
                    a(f"v_pk_add_f32 {vr(E + 2 * j, 2)}, {vr(E + 2 * j, 2)}, 1.0 op_sel_hi:[1,0]")
                for j in range(8):
                    if not NO_SILU:
                        a(f"v_rcp_f32 v{E + j}, v{E + j}")
                for j in range(4):
                    a(f"v_pk_mul_f32 {vr(X + 2 * j, 2)}, {vr(X + 2 * j, 2)}, {vr(E + 2 * j, 2)}")
                O = 52 + (qq * 4)
                for j in range(4):
                    a(f"v_cvt_pk_bf16_f32 v{O + j}, v{X + 2 * j}, v{X + 2 * j + 1}")
                a("s_nop 1")
                a(f"v_permlane32_swap_b32 v{O}, v{O + 2}")
                a(f"v_permlane32_swap_b32 v{O + 1}, v{O + 3}")
                if not NO_ST:
                    a(f"buffer_store_dwordx4 {vr(O, 4)}, v{2 + sm}, s[12:15], s16 offen offset:{sn * 1024 + qq * 512} {STF}")
    stamp(a, 3, 0, 21, 56)
    a("s_waitcnt vmcnt(0)")
    stamp(a, 4, 0, 21, 56)
    a("s_endpgm")
    a.label("G1_REPACK")
    a("s_load_dwordx2 s[36:37], s[0:1], 16")
    a("v_lshrrev_b32 v1, 6, v0")
    a("v_and_b32 v12, 63, v0")
    a("v_readfirstlane_b32 s21, v1")
    a("v_mov_b32 v1, v12")
    emit_voffw(a)
    a("v_lshlrev_b32 v7, 4, v1")
    a(f"s_sub_u32 s22, s2, {G1_TILES}")
    a("s_lshl_b32 s22, s22, 2")
    a("s_add_u32 s22, s22, s21")
    a("s_waitcnt lgkmcnt(0)")
    srd(a, 8, 36, W2_BYTES)
    srd(a, 12, 32, WS_BYTES)
    a("s_nop 4")
    def hb_scalars(it, ssrc, sdst):
        a(f"s_add_u32 s23, s22, {128 * it}")
        a("s_lshr_b32 s24, s23, 1")
        a("s_mul_i32 s25, s24, 1214")
        a("s_lshr_b32 s25, s25, 15")
        a("s_mul_i32 s26, s25, 27")
        a("s_sub_u32 s26, s24, s26")
        a("s_and_b32 s27, s23, 1")
        a("s_lshl_b32 s26, s26, 1")
        a("s_add_u32 s26, s26, s27")
        a("s_mul_i32 s26, s26, 40960")
        a("s_mul_i32 s25, s25, 160")
        a(f"s_add_u32 s{ssrc}, s26, s25")
        a("s_mul_i32 s27, s23, 5120")
        a(f"s_add_u32 s{sdst}, s27, {W2P_OFF}")
        a(f"s_add_u32 s{sdst + 1}, s{sdst}, 4096")

    def hb_stores(it, last_wait):
        for j in range(5):
            a(f"s_waitcnt vmcnt({last_wait - j})")
            if j < 4:
                a(f"buffer_store_dwordx4 {vr(16 + it * 20 + j * 4, 4)}, v7, s[12:15], s{48 + it * 2} offen offset:{j * 1024} {STF}")
            else:
                a(f"buffer_store_dwordx4 {vr(16 + it * 20 + j * 4, 4)}, v7, s[12:15], s{49 + it * 2} offen {STF}")

    for it in range(3):
        hb_scalars(it, 40 + it, 48 + it * 2)
        for j in range(5):
            a(f"buffer_load_dwordx4 {vr(16 + it * 20 + j * 4, 4)}, v{2 + j}, s[8:11], s{40 + it} offen")
    a(f"s_cmp_ge_u32 s22, {432 - 384}")
    a("s_cbranch_scc1 G1_RP3")
    hb_scalars(3, 43, 54)
    for j in range(5):
        a(f"buffer_load_dwordx4 {vr(16 + 60 + j * 4, 4)}, v{2 + j}, s[8:11], s43 offen")
    for it in range(4):
        for j in range(5):
            a(f"s_waitcnt vmcnt({19})")
            if j < 4:
                a(f"buffer_store_dwordx4 {vr(16 + it * 20 + j * 4, 4)}, v7, s[12:15], s{48 + it * 2} offen offset:{j * 1024} {STF}")
            else:
                a(f"buffer_store_dwordx4 {vr(16 + it * 20 + j * 4, 4)}, v7, s[12:15], s{49 + it * 2} offen {STF}")
    a("s_endpgm")
    a.label("G1_RP3")
    for it in range(3):
        for j in range(5):
            a(f"s_waitcnt vmcnt({14})")
            if j < 4:
                a(f"buffer_store_dwordx4 {vr(16 + it * 20 + j * 4, 4)}, v7, s[12:15], s{48 + it * 2} offen offset:{j * 1024} {STF}")
            else:
                a(f"buffer_store_dwordx4 {vr(16 + it * 20 + j * 4, 4)}, v7, s[12:15], s{49 + it * 2} offen {STF}")
    a.label("G1_END")
    a("s_endpgm")
    a.raw(kd("gemm1_kernel", 256 if STAMP else 128))


G2_WGS = 256
G2_LDS = 4 * 3 * 10240


def gen_gemm2(a):
    a.raw(".text")
    a.raw(".globl gemm2_kernel")
    a.raw(".p2align 8")
    a.raw(".type gemm2_kernel,@function")
    a.label("gemm2_kernel")
    a(f"s_cmp_ge_u32 s2, {G2_WGS}")
    a("s_cbranch_scc1 G2_END")
    a("s_load_dwordx4 s[28:31], s[0:1], 16")
    a("s_load_dwordx2 s[32:33], s[0:1], 40")
    a("s_and_b32 s24, s2, 7")
    a("s_lshr_b32 s25, s2, 3")
    if os.environ.get("G2MAP") == "81":
        a("s_lshl_b32 s26, s24, 2")
        a("s_and_b32 s27, s25, 3")
        a("s_add_u32 s26, s26, s27")
        a("s_lshr_b32 s34, s25, 2")
    else:
        a("s_and_b32 s26, s24, 3")
        a("s_lshl_b32 s26, s26, 3")
        a("s_and_b32 s27, s25, 7")
        a("s_add_u32 s26, s26, s27")
        a("s_lshr_b32 s24, s24, 2")
        a("s_lshl_b32 s24, s24, 2")
        a("s_lshr_b32 s25, s25, 3")
        a("s_add_u32 s34, s24, s25")
    a("s_lshl_b32 s20, s26, 6")
    a("s_mul_i32 s21, s34, 80")
    a("v_lshrrev_b32 v1, 6, v0")
    a("v_and_b32 v12, 63, v0")
    a("v_readfirstlane_b32 s19, v1")
    a("v_mov_b32 v1, v12")
    a("v_lshlrev_b32 v2, 4, v1")
    a("s_lshr_b32 s24, s20, 4")
    a(f"s_mul_i32 s24, s24, {54 * 1024}")
    a("v_add_u32 v7, s24, v2")
    for f in range(1, 4):
        a(f"v_add_u32 v{7 + f}, {54 * 1024 * f}, v7")
    a("v_lshrrev_b32 v12, 5, v1")
    a("v_lshlrev_b32 v12, 4, v12")
    a("v_lshrrev_b32 v13, 4, v1")
    a("v_and_b32 v13, 1, v13")
    a("v_lshlrev_b32 v13, 2, v13")
    a("v_add_u32 v12, v12, v13")
    a("v_and_b32 v13, 15, v1")
    a("v_lshrrev_b32 v13, 2, v13")
    a("v_add_u32 v12, v12, v13")
    a("v_mul_u32_u24 v12, 160, v12")
    a("v_and_b32 v13, 3, v1")
    a("v_lshlrev_b32 v13, 3, v13")
    a("v_add_u32 v12, v12, v13")
    a("s_mul_i32 s18, s19, 30720")
    a("v_add_u32 v11, s18, v12")
    a("s_mul_i32 s17, s34, 27")
    a("s_add_u32 s17, s17, s19")
    a("s_mul_i32 s17, s17, 10240")
    a(f"s_add_u32 s17, s17, {W2P_OFF}")
    a("s_lshl_b32 s23, s19, 11")
    a("s_waitcnt lgkmcnt(0)")
    srd(a, 4, 32, H_BYTES)
    srd(a, 8, 32, WS_BYTES)
    srd(a, 12, 30, O_BYTES)
    a("s_nop 4")
    stamp(a, 0, 1, 19, 8)

    AFR = [16, 36]
    HB = 56
    ACC = 152

    a.reset_track()

    def vm_ops(t):
        b = t % 3
        ops = []
        tag = ("st", t)
        for j in range(10):
            def f(j=j):
                a(f"s_add_u32 m0, s18, {b * 10240 + j * 1024}")
                a(f"s_add_u32 s16, s17, {t * 40960 + j * 1024}")
                a.vm(f"buffer_load_dwordx4 v2, s[8:11], s16 offen lds", tag)
            ops.append(f)
        hops = []
        for f_ in range(4):
            for kk in range(2):
                def g(f_=f_, kk=kk):
                    a(f"s_add_u32 s22, s23, {t * 8192}")
                    a.vm(f"buffer_load_dwordx4 {vr(HB + b * 32 + (f_ * 2 + kk) * 4, 4)}, v{7 + f_}, s[4:7], s22 offen offset:{kk * 1024}", tag)
                hops.append(g)
        out = []
        while ops or hops:
            if ops:
                out.append(ops.pop(0))
            if hops:
                out.append(hops.pop(0))
        return out

    def rd_ops(t, kk):
        b = t % 3
        ops = []
        for ns in range(5):
            for second in range(2):
                ops.append(lambda ns=ns, second=second: a.ds(
                    f"ds_read_b64_tr_b16 {vr(AFR[kk] + ns * 4 + second * 2, 2)}, v11 offset:{b * 10240 + kk * 32 * 160 + second * 8 * 160 + ns * 32}", ("fr", t, kk)))
        return ops

    def half(t, kk, cnt):
        b = t % 3
        a.wait(ltag=("fr", t, kk))
        if kk == 1 and t + 1 < cnt:
            a.wait(vtag=("st", t + 1))
        mf = []
        for f_ in range(4):
            for ns in range(5):
                c = ACC + (f_ * 5 + ns) * 4
                src = "0" if (t == 0 and kk == 0) else vr(c, 4)
                mf.append(f"v_mfma_f32_16x16x32_bf16 {vr(c, 4)}, {vr(AFR[kk] + ns * 4, 4)}, {vr(HB + b * 32 + (f_ * 2 + kk) * 4, 4)}, {src}")
        if kk == 0:
            rd = rd_ops(t, 1)
        elif t + 1 < cnt:
            rd = rd_ops(t + 1, 0)
        else:
            rd = []
        vm = vm_ops(t + 2)[kk * 9:kk * 9 + 9] if t + 2 < cnt else []
        fill = []
        while rd or vm:
            if rd:
                fill.append(rd.pop(0))
            if vm:
                fill.append(vm.pop(0))
        interleave(a, mf, fill)

    for f in vm_ops(0):
        f()
    for f in vm_ops(1):
        f()
    a.wait(vtag=("st", 0))
    stamp(a, 1, 1, 19, 8)
    for f in rd_ops(0, 0):
        f()
    for t in range(4):
        half(t, 0, 7)
        half(t, 1, 7)
    a("s_cmp_eq_u32 s19, 3")
    a("s_cbranch_scc1 G2_SHORT")
    saved = (list(a.vq), list(a.lq))
    for t in range(4, 7):
        half(t, 0, 7)
        half(t, 1, 7)
    a("s_branch G2_RED")
    a.label("G2_SHORT")
    a.vq, a.lq = list(saved[0]), list(saved[1])
    for t in range(4, 6):
        half(t, 0, 6)
        half(t, 1, 6)
    a.label("G2_RED")
    stamp(a, 2, 1, 19, 8)
    a("v_lshlrev_b32 v12, 4, v1")
    a("s_mul_i32 s24, s19, 20480")
    a("v_add_u32 v13, s24, v12")
    a("s_mul_i32 s24, s19, 5120")
    a("v_add_u32 v14, s24, v12")
    a("v_add_u32 v15, 40960, v14")
    a("s_nop 7")
    a("s_barrier")
    for f in range(4):
        for ns in range(5):
            a(f"ds_write_b128 v13, {vr(ACC + (f * 5 + ns) * 4, 4)} offset:{(f * 5 + ns) * 1024}")
    a("s_waitcnt lgkmcnt(0)")
    a("s_barrier")
    R = 16
    for src in range(4):
        for ns in range(5):
            a(f"ds_read_b128 {vr(R + (src * 5 + ns) * 4, 4)}, v{14 + (src >> 1)} offset:{(src & 1) * 20480 + ns * 1024}")
    a("v_and_b32 v12, 15, v1")
    a("s_lshl_b32 s24, s19, 4")
    a("s_add_u32 s24, s24, s20")
    a("v_add_u32 v12, s24, v12")
    a("v_mul_u32_u24 v12, 0x500, v12")
    a("v_lshrrev_b32 v13, 4, v1")
    a("v_lshlrev_b32 v13, 3, v13")
    a("s_lshl_b32 s24, s21, 1")
    a("v_add_u32 v13, s24, v13")
    a("v_add_u32 v12, v12, v13")
    a("s_waitcnt lgkmcnt(0)")
    for ns in range(5):
        for r in range(2):
            d0 = R + ns * 4 + r * 2
            for src in range(1, 4):
                a(f"v_pk_add_f32 {vr(d0, 2)}, {vr(d0, 2)}, {vr(R + (src * 5 + ns) * 4 + r * 2, 2)}")
    for ns in range(5):
        d0 = R + ns * 4
        a(f"v_cvt_pk_bf16_f32 v{100 + ns * 2}, v{d0}, v{d0 + 1}")
        a(f"v_cvt_pk_bf16_f32 v{101 + ns * 2}, v{d0 + 2}, v{d0 + 3}")
    for ns in range(5):
        a(f"buffer_store_dwordx2 {vr(100 + ns * 2, 2)}, v12, s[12:15], 0 offen offset:{ns * 32}")
    stamp(a, 3, 1, 19, 8)
    a("s_waitcnt vmcnt(0)")
    stamp(a, 4, 1, 19, 8)
    a.label("G2_END")
    a("s_endpgm")
    a.raw(kd("gemm2_kernel", 256 if STAMP else 232))


def main():
    for c in range(320):
        assert (c * 205) >> 11 == c // 10
    for b in range(216):
        assert (b * 1214) >> 15 == b // 27
    a = Asm()
    a.raw(HEADER.format(g1=G1_WGS, l1=G1_LDS, g2=G2_WGS, l2=G2_LDS).rstrip("\n"))
    gen_gemm1(a)
    gen_gemm2(a)
    open(OUT, "w").write(a.text())
    print("wrote", OUT, len(a.lines), "lines")


main()
```
